```python
import torch

def _softmax(x, axis=-1):
    return torch.softmax(x, dim=axis)
def _gelu(x):
    return torch.nn.functional.gelu(x, approximate="tanh")
def _silu(x):
    return torch.nn.functional.silu(x)
def _sigmoid(x):
    return torch.sigmoid(x)
def _layernorm(x, axis=-1, eps=1e-5):
    m = x.mean(dim=axis, keepdim=True)
    v = x.var(dim=axis, keepdim=True, unbiased=False)
    return (x - m) / torch.sqrt(v + eps)
def _scatter_add(tgt, idx, src, axis=0):
    return tgt.clone().index_add_(axis, idx, src)
def _segment_sum(src, seg, n):
    out = torch.zeros((n,) + src.shape[1:], dtype=src.dtype)
    return out.index_add_(0, seg, src)
def _pad(x, pw):
    flat = tuple(v for pair in reversed(pw) for v in pair)
    return torch.nn.functional.pad(x, flat)

kernel_name = 'concat_heads__gqa_block_cached__gqa_block_cached__decode'

def setup_inputs():

    _w = (lambda a: (lambda t: t.to(torch.bfloat16) if t.is_floating_point() else t)(torch.as_tensor(a)))
    def _A_setup():
        B, Sq, D = 2, 1, 576
        Hq, Hkv, Sk, Dh = 32, 16, 4096, 128
        assert Hq % Hkv == 0, (Hq, Hkv)
        return {
            "x": _w((lambda *s: torch.randn(*s, dtype=torch.bfloat16) * 0.8)(B, Sq, D)),
            "k_cache": _w((lambda *s: torch.randn(*s, dtype=torch.bfloat16) * 0.8)(B, Hkv, Sk, Dh)),
            "v_cache": _w((lambda *s: torch.randn(*s, dtype=torch.bfloat16) * 0.05)(B, Hkv, Sk, Dh)),
            "wq": _w((lambda *s: torch.randn(*s, dtype=torch.bfloat16) * 0.8)(D, Hq * Dh) * (D ** -0.5)),
            "wo": _w((lambda *s: torch.randn(*s, dtype=torch.bfloat16) * 0.05)(Hq * Dh, D) * ((Hq * Dh) ** -0.5)),
        }
    _A_in = _A_setup()

    def _B_setup():
        B, Sq, D = 2, 1, 576
        Hq, Hkv, Sk, Dh = 32, 16, 4096, 128
        assert Hq % Hkv == 0, (Hq, Hkv)
        return {
            "x": _w((lambda *s: torch.randn(*s, dtype=torch.bfloat16) * 0.8)(B, Sq, D)),
            "k_cache": _w((lambda *s: torch.randn(*s, dtype=torch.bfloat16) * 0.8)(B, Hkv, Sk, Dh)),
            "v_cache": _w((lambda *s: torch.randn(*s, dtype=torch.bfloat16) * 0.05)(B, Hkv, Sk, Dh)),
            "wq": _w((lambda *s: torch.randn(*s, dtype=torch.bfloat16) * 0.8)(D, Hq * Dh) * (D ** -0.5)),
            "wo": _w((lambda *s: torch.randn(*s, dtype=torch.bfloat16) * 0.05)(Hq * Dh, D) * ((Hq * Dh) ** -0.5)),
        }
    _B_in = _B_setup()

    return {
        "A_x": _A_in["x"],
        "A_k_cache": _A_in["k_cache"],
        "A_v_cache": _A_in["v_cache"],
        "A_wq": _A_in["wq"],
        "A_wo": _A_in["wo"],
        "B_x": _B_in["x"],
        "B_k_cache": _B_in["k_cache"],
        "B_v_cache": _B_in["v_cache"],
        "B_wq": _B_in["wq"],
        "B_wo": _B_in["wo"],
    }

def reference(A_x, A_k_cache, A_v_cache, A_wq, A_wo, B_x, B_k_cache, B_v_cache, B_wq, B_wo):
    def _A_ref(x, k_cache, v_cache, wq, wo):
        B, Sq, D = x.shape
        Hq, Dh = 32, 128
        Hkv = k_cache.shape[1]
        rep = Hq // Hkv
        q = (lambda x, *d: x.permute(*d))((x @ wq).reshape(B, Sq, Hq, Dh), 0, 2, 1, 3)
        k = (lambda x, n, axis: torch.repeat_interleave(x, n, dim=axis))(k_cache, rep, axis=1)
        v = (lambda x, n, axis: torch.repeat_interleave(x, n, dim=axis))(v_cache, rep, axis=1)
        scores = torch.einsum("bhqd,bhkd->bhqk", q, k) * (Dh ** -0.5)
        p = _softmax(scores, axis=-1)
        o = torch.einsum("bhqk,bhkd->bhqd", p, v)
        return (lambda x, *d: x.permute(*d))(o, 0, 2, 1, 3).reshape(B, Sq, Hq * Dh) @ wo

    def _B_ref(x, k_cache, v_cache, wq, wo):
        B, Sq, D = x.shape
        Hq, Dh = 32, 128
        Hkv = k_cache.shape[1]
        rep = Hq // Hkv
        q = (lambda x, *d: x.permute(*d))((x @ wq).reshape(B, Sq, Hq, Dh), 0, 2, 1, 3)
        k = (lambda x, n, axis: torch.repeat_interleave(x, n, dim=axis))(k_cache, rep, axis=1)
        v = (lambda x, n, axis: torch.repeat_interleave(x, n, dim=axis))(v_cache, rep, axis=1)
        scores = torch.einsum("bhqd,bhkd->bhqk", q, k) * (Dh ** -0.5)
        p = _softmax(scores, axis=-1)
        o = torch.einsum("bhqk,bhkd->bhqd", p, v)
        return (lambda x, *d: x.permute(*d))(o, 0, 2, 1, 3).reshape(B, Sq, Hq * Dh) @ wo

    a = _A_ref(A_x, A_k_cache, A_v_cache, A_wq, A_wo)
    b = _B_ref(B_x, B_k_cache, B_v_cache, B_wq, B_wo)
    return torch.concatenate([a, b], axis=-1)
```

```python
import sys, struct, subprocess, re
NAME = "concat_heads__gqa_block_cached__gqa_block_cached__decode_kernel"
def f2u(x): return struct.unpack("<I", struct.pack("<f", x))[0]
HEADER = open("concat_heads__gqa_block_cached__gqa_block_cached__decode.s.ref").read().split("; Override launch")[0]

PROG = 0x8000
QREC = 0x10000
OREC = 0x100000
PREC = 0x180000
DELTA = 0x200000
WSSZ = 0x400000
STAMP = 0x8000000
QLDS = 131072
OLDS = QLDS + 512
COMB = OLDS + 512
MLA  = COMB + 4096
XLDS = MLA + 2048
FLG  = XLDS + 2048
LDSSZ = FLG + 64

class G:
    def __init__(s): s.L = []
    def __call__(s, t):
        for line in t.strip().split("\n"): s.L.append("    " + line.strip())
    def lab(s, n): s.L.append(n + ":")
    def mark(s, n): s.L.append("    ;@" + n)
    def c(s, t): s.L.append("    ; " + t)

def sizes_of(lines, head, tail):
    open("_g.s", "w").write(head + "\n".join(lines) + "\n" + tail)
    subprocess.run(["clang", "-x", "assembler", "-target", "amdgcn-amd-amdhsa", "-mcpu=gfx950", "-c", "_g.s", "-o", "_g.o"], check=True)
    out = subprocess.run(["llvm-objdump", "-d", "--mcpu=gfx950", "_g.o"], capture_output=True, text=True).stdout
    return [4 * len(m.group(1).split()) for m in re.finditer(r"// [0-9A-F]{12}: ((?:[0-9A-F]{8} ?)+)", out)]

def add_pads(lines, head, tail, gap):
    sz = sizes_of(lines, head, tail); k = 0; out = []; on = False; acc = 0; n = 0
    for ln in lines:
        t = ln.strip()
        if t == ";@WARM_ON": on = True; acc = gap; continue
        if t == ";@WARM_OFF": on = False; continue
        if t.endswith(":") or t.startswith(";") or not t: out.append(ln); continue
        if on and acc + sz[k] + 4 > gap:
            out.append(f"L_w{n}:"); out.append(f"    s_cbranch_execz L_w{n+1}"); n += 1; acc = 4
        if on: acc += sz[k]
        out.append(ln); k += 1
    assert k == len(sz), (k, len(sz))
    return out, n

def gen(NW=20, NWL=48, FU=1, LU=7, REL=1, WOGO=None, KA=6, PH=1, WARM=64, NWAVE=10, MERGE=1, FORCE=0, LAY=0, RB=1, TR=3, TX=0, PR=0, SPS=0, W79=0, S1=3, TLB=0, NWF=None, DP=0, QD=0, QSL=0, HP=0, SR=3, UD=None, NHI=26, TH=0, SC=8, CEND=104, CST=20,
        stamps=False, LIMIT=2097151, amp=None, ampid=0, fl="nt"):
    a = G()
    NT = (NWL + 3) // 4; NTM = ((NHI or NW) + 3) // 4
    if WOGO is None: WOGO = NT
    sG, sJ, sP, sKVH, sB, sS, sW, sT, sT2 = "s30", "s31", "s32", "s33", "s34", "s35", "s36", "s37", "s38"
    sPO, sLAST = "s16", "s17"
    sE, sT4, sC, sU, sKO, sM0, sCNT, sFF = "s39", "s3", "s4", "s5", "s7", "s8", "s9", "s10"
    sN, sNEED, sTL, sTAG, sTOG, sTTG, sQO = "s19", "s20", "s21", "s71", "s68", "s69", "s70"
    K_, V_, WS_, X_, WQ_, WO_, OUT_ = "s[40:43]", "s[44:47]", "s[48:51]", "s[52:55]", "s[56:59]", "s[60:63]", "s[64:67]"
    ST = lambda i: f"s[{88+2*i}:{89+2*i}]"
    vTg = 80; vFL = 81; vTL = 76
    sTK = [None, "s77", "s78", "s79"]; vTK = [None, 148, 149, 150]
    tv = lambda k, v0: v0 if k == 0 else vTK[k]
    def stamp(i):
        if stamps or amp: a(f"s_memrealtime {ST(i)}")
    def spin(name, off, want, sleep, field=None):
        a.lab(name)
        if sleep: a(f"s_sleep {sleep}")
        a(f"ds_read_b32 v6, v{vFL} offset:{off}\ns_waitcnt lgkmcnt(0)\nv_readfirstlane_b32 {sT}, v6\ns_nop 0")
        if field is not None: a(f"s_bfe_u32 {sT}, {sT}, {(8 << 16) | field:#x}")
        a(f"s_cmp_lt_u32 {sT}, {want}\ns_cbranch_scc1 {name}")
    def minprog(name, want, r):
        a.lab(name)
        a(f"""
        ds_read_b128 v[{r}:{r+3}], v{vFL} offset:16
        s_waitcnt lgkmcnt(0)
        v_min_u32 v{r}, v{r}, v{r+1}
        v_min3_u32 v{r}, v{r}, v{r+2}, v{r+3}
        s_nop 0
        v_readfirstlane_b32 {sT}, v{r}
        s_nop 0
        s_cmp_lt_u32 {sT}, {want}
        s_cbranch_scc1 {name}
        """)
    def poll(name, loads, alt=False, fallback=None):
        n = len(loads); tag = sTAG if alt else sT4
        a(f"s_mov_b32 {sCNT}, {LIMIT}")
        a.lab(name)
        for (d, vo, imm) in loads:
            o = f" offset:{imm}" if imm else ""
            a(f"buffer_load_dwordx4 v[{d}:{d+3}], v{vo}, {WS_}, {sPO} offen{o} sc1")
        a(f"s_sub_u32 {sCNT}, {sCNT}, 1\ns_cbranch_scc1 {name}_d")
        if fallback:
            a(f"s_cmp_eq_u32 {sCNT}, {LIMIT - KA}\ns_cbranch_scc1 {fallback}")
            a.lab(name + "_k")
        for i, (d, vo, imm) in enumerate(loads):
            a(f"s_waitcnt vmcnt({n-1-i})")
            for k in range(4):
                if i == 0 and k == 0: a(f"v_xor_b32 v6, {tag}, v{d}")
                else: a(f"v_bitop3_b32 v6, v6, v{d+k}, {tag if k == 0 else sTK[k]} bitop3:0xf6")
        a(f"v_and_b32 v6, 0xff, v6\nv_cmp_ne_u32 vcc, 0, v6")
        if alt: a(f"s_xor_b32 {sPO}, {sPO}, {sTOG}\ns_xor_b32 {sTAG}, {sTAG}, {sTTG}")
        a(f"s_cbranch_vccnz {name}")
        a.lab(name + "_d")
    def q_remote():
        for c in range(4): a(f"v_bfi_b32 v{64+c}, {sFF}, v{tv(c, vTg)}, v{72+c}")
        a(f"""
        s_mov_b32 exec_lo, 0x00ff00ff
        s_mov_b32 exec_hi, 0x00ff00ff
        buffer_store_dwordx4 v[64:67], v5, {WS_}, {sQO} offen sc1
        s_mov_b64 exec, -1
        """)
    common = f"""
    s_mov_b32 s48, s28
    s_mov_b32 s49, s29
    s_mov_b32 s50, {WSSZ}
    s_mov_b32 s51, 0x20000
    v_lshrrev_b32 v1, 4, v0
    v_and_b32 v2, 15, v0
    v_mov_b32 v{vFL}, {FLG}
    s_mov_b32 {sFF}, 0xff
    """
    eload = f"s_lshl_b32 {sT2}, {sP}, 8\ns_load_dword {sE}, s[28:29], {sT2}"
    tagset = f"""
    s_add_u32 {sE}, {sE}, 1
    s_mov_b32 {sT4}, {sE}
    s_lshr_b32 {sTK[1]}, {sE}, 8
    s_lshr_b32 {sTK[2]}, {sE}, 16
    s_lshr_b32 {sTK[3]}, {sE}, 24
    v_mov_b32 v{vTg}, {sT4}
    v_mov_b32 v{vTK[1]}, {sTK[1]}
    v_mov_b32 v{vTK[2]}, {sTK[2]}
    v_mov_b32 v{vTK[3]}, {sTK[3]}
    s_getreg_b32 {sTL}, hwreg(HW_REG_XCC_ID)
    s_and_b32 {sTL}, {sTL}, 7
    s_lshl_b32 {sTL}, {sTL}, 5
    s_add_u32 {sTL}, {sTL}, {sE}
    """
    finset = f"""
    v_lshrrev_b32 v57, 3, v0
    v_mul_u32_u24 v57, {4*1152}, v57
    v_and_b32 v58, 7, v0
    v_lshl_add_u32 v57, v58, 4, v57
    v_lshrrev_b32 v5, 2, v58
    v_mul_u32_u24 v5, 1152, v5
    v_and_b32 v58, 3, v58
    v_lshl_add_u32 v58, v58, 2, v1
    s_mul_i32 {sT}, {sP}, 576
    s_mul_i32 {sT2}, {sS}, 144
    s_add_u32 {sT}, {sT}, {sT2}
    s_lshl_b32 {sT2}, {sKVH}, 4
    s_add_u32 {sT}, {sT}, {sT2}
    v_add3_u32 v58, v58, v5, {sT}
    v_lshlrev_b32 v58, 1, v58
    s_mov_b32 s64, s24
    s_mov_b32 s65, s25
    s_mov_b32 s66, 4608
    s_mov_b32 s67, 0x20000
    s_lshl_b32 {sT}, {sP}, 2
    s_add_u32 {sT}, {sT}, {sS}
    s_mul_i32 s72, {sT}, {32*1152}
    s_lshl_b32 {sT}, {sKVH}, 7
    s_add_u32 s72, s72, {sT}
    s_add_u32 s72, s72, {PREC}
    s_lshl_b32 {sT}, {sB}, 4
    s_add_u32 s73, {sT}, {sKVH}
    """
    tagL = sTL if not FORCE else "0x5b5b5b5b"
    a.L.append(f"{NAME}:")
    a(f"""
    s_load_dwordx16 s[4:19], s[0:1], 0
    s_load_dwordx8 s[20:27], s[0:1], 64
    s_load_dwordx2 s[28:29], s[0:1], 96
    s_cmp_ge_u32 s2, 256
    s_cbranch_scc1 L_end
    """)
    stamp(0)
    a.c("workgroup -> problem p, kv head, member j = (batch, key quarter) = (q head, column quarter)")
    a(f"""
    v_lshrrev_b32 v1, 6, v0
    v_and_b32 v0, 63, v0
    s_lshr_b32 {sP}, s2, 7
    v_readfirstlane_b32 {sW}, v1
    s_and_b32 {sKVH}, s2, 7
    s_bfe_u32 {sT}, s2, 0x10006
    s_lshl_b32 {sT}, {sT}, 3
    s_or_b32 {sKVH}, {sKVH}, {sT}
    s_bfe_u32 {sJ}, s2, 0x30003
    s_lshl_b32 {sG}, {sP}, 4
    s_or_b32 {sG}, {sG}, {sKVH}
    s_bfe_u32 {sB}, s2, 0x10005
    s_bfe_u32 {sS}, s2, 0x20003
    s_cmp_ge_u32 {sW}, 4
    s_cbranch_scc1 L_hi
    """)
    a.c("waves 0-3: rows 72j..72j+71 of wq, 64 columns per wave, both batches")
    vX = 8; vWq = 28; vQa = 64
    a(f"""
    v_lshrrev_b32 v3, 3, v0
    v_and_b32 v4, 7, v0
    v_lshlrev_b32 v6, 13, v3
    v_lshl_add_u32 v6, v4, 4, v6
    s_mul_i32 {sT}, {sJ}, {72*8192}
    s_lshl_b32 {sT2}, {sKVH}, 9
    s_add_u32 {sT}, {sT}, {sT2}
    s_lshl_b32 {sT2}, {sW}, 7
    s_add_u32 {sT}, {sT}, {sT2}
    s_mov_b32 s58, {576*8192}
    s_mov_b32 s59, 0x20000
    s_cmp_eq_u32 {sP}, 0
    s_waitcnt lgkmcnt(0)
    s_cselect_b64 s[56:57], s[10:11], s[20:21]
    s_cselect_b64 s[52:53], s[4:5], s[14:15]
    """)
    for i in range(9):
        a(f"buffer_load_dwordx4 v[{vWq+4*i}:{vWq+4*i+3}], v6, {WQ_}, {sT} offen {fl}")
        if i < 8: a(f"s_add_u32 {sT}, {sT}, 65536")
    a(f"""
    s_mov_b32 s54, 2304
    s_mov_b32 s55, 0x20000
    v_lshlrev_b32 v5, 4, v0
    v_cmp_lt_u32 vcc, 8, v0
    v_add_u32 v7, {1152-144}, v5
    s_lshl_b32 {sT}, {sW}, 9
    s_add_u32 m0, {sT}, {XLDS}
    v_cndmask_b32 v5, v5, v7, vcc
    s_mul_i32 {sT2}, {sJ}, 144
    s_mov_b64 exec, 0x3ffff
    buffer_load_dwordx4 v5, {X_}, {sT2} offen lds
    s_mov_b64 exec, -1
    """)
    if REL: a(f"s_waitcnt vmcnt({10-REL})")
    a(f"s_barrier\ns_add_u32 {sT}, {sT}, {XLDS}\nv_lshl_add_u32 v5, v3, 1, {sT}")
    a(eload); a(common)
    for i in range(18): a(f"v_mov_b32 v{vX+i}, 0")
    for i in range(16): a(f"v_mov_b32 v{vQa+i}, 0")
    a("s_waitcnt vmcnt(0) lgkmcnt(0)")
    if UD: a(f"s_memrealtime {ST(4)}")
    a.mark("WARM_ON")
    for i in range(9):
        for b in range(2): a(f"ds_read_u16_d16_hi v{vX+2*i+b}, v5 offset:{16*i+144*b}")
    a(tagset)
    for i in range(9):
        a(f"s_waitcnt lgkmcnt({min(15, 16-2*i)})")
        for d in range(4):
            w = vWq + 4*i + d
            a(f"""
            v_lshlrev_b32 v82, 16, v{w}
            v_and_b32 v83, 0xffff0000, v{w}
            v_pk_fma_f32 v[{vQa+4*d}:{vQa+4*d+1}], v[{vX+2*i}:{vX+2*i+1}], v[82:83], v[{vQa+4*d}:{vQa+4*d+1}] op_sel:[0,0,0] op_sel_hi:[1,0,1]
            v_pk_fma_f32 v[{vQa+4*d+2}:{vQa+4*d+3}], v[{vX+2*i}:{vX+2*i+1}], v[82:83], v[{vQa+4*d+2}:{vQa+4*d+3}] op_sel:[0,1,0] op_sel_hi:[1,1,1]
            """)
    a(f"""
    s_lshl_b32 {sT}, {sG}, 3
    s_add_u32 {sT}, {sT}, {sJ}
    s_lshl_b32 {sT}, {sT}, 11
    s_lshl_b32 {sT2}, {sW}, 8
    s_add_u32 {sT}, {sT}, {sT2}
    """)
    for c in range(8): a(f"v_permlane32_swap_b32 v{vQa+2*c}, v{vQa+2*c+1}")
    for c in range(8): a(f"v_add_f32 v{vQa+2*c}, v{vQa+2*c}, v{vQa+2*c+1}")
    a(f"s_add_u32 {sQO}, {sT}, {QREC}\ns_add_u32 {sT}, {sQO}, {DELTA}")
    for c in range(4): a(f"v_permlane16_swap_b32 v{vQa+2*c}, v{vQa+8+2*c}")
    for c in range(4): a(f"v_add_f32 v{vQa+2*c}, v{vQa+2*c}, v{vQa+8+2*c}")
    a(f"""
    v_lshrrev_b32 v5, 5, v0
    v_lshlrev_b32 v5, 10, v5
    v_lshl_add_u32 v5, v4, 5, v5
    v_and_b32 v6, 1, v1
    v_lshl_add_u32 v5, v6, 4, v5
    """)
    for c in range(4): a(f"v_add_f32_dpp v{72+c}, v{vQa+2*c}, v{vQa+2*c} row_ror:8 row_mask:0xf bank_mask:0xf")
    a(f"v_mov_b32 v{vTL}, {sTL}")
    for c in range(4): a(f"v_bfi_b32 v{64+c}, {sFF}, v{tv(c, vTL)}, v{72+c}")
    a(f"""
    s_mov_b32 exec_lo, 0x00ff00ff
    s_mov_b32 exec_hi, 0x00ff00ff
    buffer_store_dwordx4 v[64:67], v5, {WS_}, {sT} offen
    s_mov_b64 exec, -1
    """)
    if UD: a(f"s_memrealtime {ST(5)}")
    if not QD: a(f"s_cmp_eq_u32 {sW}, 0\ns_cbranch_scc0 L_cset")
    def gather(vo, vD):
        a.c("wave 0: sum the eight partials of this batch; die-tagged copy first, memory-side copy after KA misses")
        a(f"""
        s_lshl_b32 {sPO}, {sG}, 14
        s_lshl_b32 {sT2}, {sB}, 10
        s_add_u32 {sPO}, {sPO}, {sT2}
        s_add_u32 {sPO}, {sPO}, {QREC + DELTA}
        v_lshlrev_b32 v{vo}, 4, v0
        s_mov_b32 {sTAG}, {tagL}
        s_mov_b32 {sTOG}, 0
        s_mov_b32 {sTTG}, 0
        v_mov_b32 v7, 1
        """)
        for i in range(1, 4): a(f"v_add_u32 v{vo+i}, {4096*i}, v{vo}")
        if not QD: a("s_waitcnt vmcnt(0)")
        elif QSL: a(f"s_sleep {QSL}")
        poll("L_pq", [(vD + 4*i, vo + (i >> 1), 2048*(i & 1)) for i in range(8)], alt=True, fallback="L_fb")
        for st in (4, 2, 1):
            for jj in range(st):
                for d in range(2): a(f"v_pk_add_f32 v[{vD+4*jj+2*d}:{vD+4*jj+2*d+1}], v[{vD+4*jj+2*d}:{vD+4*jj+2*d+1}], v[{vD+4*(jj+st)+2*d}:{vD+4*(jj+st)+2*d+1}]")
        a(f"""
        v_cvt_pk_bf16_f32 v{vD}, v{vD}, v{vD+1}
        v_cvt_pk_bf16_f32 v{vD+1}, v{vD+2}, v{vD+3}
        v_lshlrev_b32 v6, 3, v0
        v_add_u32 v6, {QLDS}, v6
        ds_write_b64 v6, v[{vD}:{vD+1}]
        ds_write_b32 v{vFL}, v7 offset:4
        """)
    vD = 16
    if not QD: gather(8, 16)
    a.lab("L_cset")
    a.c("consumers: wave c takes keys 32c..32c+31 of every group of 128")
    vKa = [10, 11, 12, 13]; vVa = list(range(14, 22)); vMask = list(range(22, 30))
    vM, vLs, vT, vU, vA = 30, 31, 32, 33, 34
    vAcc = 36; vQ = 40; vS = 56; vP = 68; vKf = 84; vBt = 116; vVf = 84
    a(f"""
    s_lshl_b32 {sM0}, {sW}, 13
    v_xor_b32 v3, v1, v2
    v_lshlrev_b32 v3, 4, v3
    v_lshl_add_u32 v3, v2, 8, v3
    v_add_u32 v{vKa[0]}, {sM0}, v3
    v_xor_b32 v{vKa[1]}, 64, v{vKa[0]}
    v_xor_b32 v{vKa[2]}, 0x80, v{vKa[0]}
    v_xor_b32 v{vKa[3]}, 0xc0, v{vKa[0]}
    v_lshrrev_b32 v3, 2, v2
    v_lshl_add_u32 v3, v1, 2, v3
    v_and_b32 v{vT}, 7, v3
    v_lshlrev_b32 v{vT}, 5, v{vT}
    v_lshl_add_u32 v3, v3, 8, v{vT}
    v_and_b32 v{vT}, 3, v2
    v_lshl_add_u32 v3, v{vT}, 3, v3
    v_add_u32 v{vVa[0]}, {sM0}, v3
    """)
    for t in range(1, 8): a(f"v_xor_b32 v{vVa[t]}, {32*t}, v{vVa[0]}")
    a(f"v_lshrrev_b32 v3, 1, v2")
    for t in range(8):
        a(f"v_cmp_eq_u32 vcc, {t}, v3\ns_nop 1\nv_cndmask_b32 v{vMask[t]}, 0, -1, vcc")
    a(f"""
    v_mov_b32 v{vM}, 0xff800000
    v_mov_b32 v{vLs}, 0
    v_mov_b32 v{vAcc}, 0
    v_mov_b32 v{vAcc+1}, 0
    v_mov_b32 v{vAcc+2}, 0
    v_mov_b32 v{vAcc+3}, 0
    s_mov_b32 {sC}, {f2u((1.0 if RB else 128**-0.5) * 1.4426950408889634):#x}
    s_mov_b32 {sU}, 0
    s_lshl_b32 {sNEED}, {sW}, 1
    s_add_u32 {sNEED}, {sNEED}, 2
    v_and_b32 v3, 1, v2
    v_lshlrev_b32 v3, 8, v3
    v_lshl_add_u32 v3, v1, 4, v3
    v_add_u32 v35, {QLDS}, v3
    s_lshl_b32 {sT}, {sW}, 9
    s_add_u32 {sT}, {sT}, {MLA}
    v_lshl_add_u32 v77, v0, 3, {sT}
    s_lshl_b32 {sT}, {sW}, 10
    s_add_u32 {sT}, {sT}, {COMB}
    v_lshl_add_u32 v78, v0, 4, {sT}
    s_lshl_b32 {sT}, {sW}, 2
    s_add_u32 {sT}, {sT}, {FLG+16}
    v_mov_b32 v79, {sT}
    s_cmp_eq_u32 {sW}, 0
    s_cselect_b32 {sN}, 0, 2
    """)
    if QD:
        a("s_cbranch_scc0 L_sp_q")
        gather(116, 84)
    a.lab("L_sp_q")
    a(f"""
    s_sleep 1
    ds_read_b32 v6, v{vFL} offset:4
    s_waitcnt lgkmcnt(0)
    v_readfirstlane_b32 {sT}, v6
    s_nop 0
    s_and_b32 {sT2}, {sT}, {sN}
    s_cbranch_scc0 L_sp_q2
    s_mov_b32 {sN}, 0
    """)
    q_remote()
    a.lab("L_sp_q2")
    a(f"s_bitcmp1_b32 {sT}, 0\ns_cbranch_scc0 L_sp_q")
    stamp(1)
    if PR: a(f"s_setprio {PR}")
    for s_ in range(4): a(f"ds_read_b128 v[{vQ+4*s_}:{vQ+4*s_+3}], v35 offset:{64*s_}")
    spin("L_consume", 0, sNEED, 0)
    a(f"s_mov_b32 {sN}, {sT}")
    order = [(kt, s_) for s_ in range(4) for kt in range(2)]
    for i, (kt, s_) in enumerate(order): a(f"ds_read_b128 v[{vKf+4*i}:{vKf+4*i+3}], v{vKa[s_]} offset:{kt*4096}")
    for i, (kt, s_) in enumerate(order):
        a(f"s_waitcnt lgkmcnt({7-i})")
        c = "0" if s_ == 0 else f"v[{vS+4*kt}:{vS+4*kt+3}]"
        a(f"v_mfma_f32_16x16x32_bf16 v[{vS+4*kt}:{vS+4*kt+3}], v[{vKf+4*i}:{vKf+4*i+3}], v[{vQ+4*s_}:{vQ+4*s_+3}], {c}")
    if HP: a(f"s_lshl_b32 {sT}, {sU}, 1\ns_add_u32 {sT}, {sT}, 1\nv_mov_b32 v{vT}, {sT}\nds_write_b32 v79, v{vT}")
    for s_ in range(4): a(f"v_xor_b32 v{vKa[s_]}, 0x10000, v{vKa[s_]}")
    a(f"""
    s_add_u32 {sU}, {sU}, 1
    s_add_u32 {sNEED}, {sNEED}, 8
    s_nop 1
    """)
    if RB:
        a.c("scores as the reference holds them: q.k rounded to bf16, times 128^-0.5, rounded to bf16 again")
        for rep in range(2):
            for i in range(4): a(f"v_cvt_pk_bf16_f32 v{vP+i}, v{vS+2*i}, v{vS+2*i+1}")
            for i in range(4): a(f"v_lshlrev_b32 v{vS+2*i}, 16, v{vP+i}\nv_and_b32 v{vS+2*i+1}, 0xffff0000, v{vP+i}")
            if rep == 0:
                for i in range(8): a(f"v_mul_f32 v{vS+i}, {f2u(128**-0.5):#x}, v{vS+i}")
    a(f"""
    v_max3_f32 v{vT}, v{vS}, v{vS+1}, v{vS+2}
    v_max3_f32 v{vU}, v{vS+4}, v{vS+5}, v{vS+6}
    v_max3_f32 v{vT}, v{vT}, v{vS+3}, v{vS+7}
    v_max_f32 v{vT}, v{vT}, v{vU}
    v_mov_b32 v{vU}, v{vT}
    s_nop 1
    v_permlane32_swap_b32 v{vT}, v{vU}
    v_max_f32 v{vT}, v{vT}, v{vU}
    v_mov_b32 v{vU}, v{vT}
    s_nop 1
    v_permlane16_swap_b32 v{vT}, v{vU}
    v_max_f32 v{vT}, v{vT}, v{vU}
    v_mul_f32 v{vT}, {sC}, v{vT}
    v_max_f32 v{vT}, v{vT}, v{vM}
    v_sub_f32 v{vA}, v{vM}, v{vT}
    v_exp_f32 v{vA}, v{vA}
    v_mov_b32 v{vM}, v{vT}
    """)
    for i in range(8): a(f"v_fma_f32 v{vS+i}, v{vS+i}, {sC}, -v{vT}")
    for i in range(8): a(f"v_exp_f32 v{vS+i}, v{vS+i}")
    for r in range(4): a(f"v_mul_f32 v{vAcc+r}, v{vA}, v{vAcc+r}")
    for i in range(4): a(f"v_cvt_pk_bf16_f32 v{vP+i}, v{vS+2*i}, v{vS+2*i+1}")
    a(f"""
    v_add_f32 v{vS}, v{vS}, v{vS+1}
    v_add_f32 v{vS+2}, v{vS+2}, v{vS+3}
    v_add_f32 v{vS+4}, v{vS+4}, v{vS+5}
    v_add_f32 v{vS+6}, v{vS+6}, v{vS+7}
    v_add_f32 v{vS}, v{vS}, v{vS+2}
    v_add_f32 v{vS+4}, v{vS+4}, v{vS+6}
    v_add_f32 v{vS}, v{vS}, v{vS+4}
    v_fma_f32 v{vLs}, v{vLs}, v{vA}, v{vS}
    """)
    for t in range(8):
        for i in range(4): a(f"v_and_b32 v{vBt+4*t+i}, v{vP+i}, v{vMask[t]}")
    a(f"""
    s_cmp_eq_u32 {sU}, 8
    s_cbranch_scc0 L_notlast
    v_mov_b32 v{vU}, v{vLs}
    s_nop 1
    v_permlane32_swap_b32 v{vLs}, v{vU}
    v_add_f32 v{vLs}, v{vLs}, v{vU}
    v_mov_b32 v{vU}, v{vLs}
    s_nop 1
    v_permlane16_swap_b32 v{vLs}, v{vU}
    v_add_f32 v{vLs}, v{vLs}, v{vU}
    ds_write_b64 v77, v[{vM}:{vM+1}]
    v_mov_b32 v{vU}, 1
    s_mov_b64 exec, 1
    ds_add_u32 v{vFL}, v{vU} offset:8
    s_mov_b64 exec, -1
    v_mov_b32 v{vU}, 0x100
    """)
    a.lab("L_notlast")
    a(f"s_cmp_lt_u32 {sN}, {sNEED}\ns_cbranch_scc0 L_pv")
    spin("L_sp_v", 0, sNEED, 0)
    a.lab("L_pv")
    stamp(2)
    for t in range(8):
        a(f"ds_read_b64_tr_b16 v[{vVf+4*t}:{vVf+4*t+1}], v{vVa[t]} offset:32768")
        a(f"ds_read_b64_tr_b16 v[{vVf+4*t+2}:{vVf+4*t+3}], v{vVa[t]} offset:36864")
    for t in range(8):
        a(f"s_waitcnt lgkmcnt({14-2*t})")
        a(f"v_mfma_f32_16x16x32_bf16 v[{vAcc}:{vAcc+3}], v[{vVf+4*t}:{vVf+4*t+3}], v[{vBt+4*t}:{vBt+4*t+3}], v[{vAcc}:{vAcc+3}]")
    a(f"s_cmp_eq_u32 {sU}, 8\ns_cbranch_scc1 L_cdone\nv_lshlrev_b32 v{vT}, {1 if HP else 0}, {sU}\nds_write_b32 v79, v{vT}")
    for t in range(8): a(f"v_xor_b32 v{vVa[t]}, 0x10000, v{vVa[t]}")
    a(f"s_add_u32 {sNEED}, {sNEED}, 8\ns_branch L_consume")
    a.lab("L_cdone")
    a(f"""
    s_nop 5
    ds_write_b128 v78, v[{vAcc}:{vAcc+3}]
    s_mov_b64 exec, 1
    ds_add_u32 v{vFL}, v{vU} offset:8
    s_mov_b64 exec, -1
    """)
    stamp(3)
    a.lab("L_outproj")
    a.c("out projection: 128 rows (one q head) x 144 columns, one 16-column tile per wave")
    if DP: a(finset)
    a(f"""
    v_lshrrev_b32 v3, 2, v2
    v_lshl_add_u32 v3, v1, 2, v3
    v_mul_u32_u24 v3, 288, v3
    v_and_b32 v4, 3, v2
    v_lshl_add_u32 v3, v4, 3, v3
    s_cmp_gt_u32 {sW}, 5
    s_subb_u32 {sU}, {sW}, 0
    s_lshl_b32 {sT}, {sU}, 5
    v_add_u32 v3, {sT}, v3
    v_and_b32 v5, 1, v2
    v_lshlrev_b32 v7, 8, v5
    v_lshl_add_u32 v7, v1, 3, v7
    v_add_u32 v7, {OLDS}, v7
    v_lshlrev_b32 v5, 6, v5
    v_lshl_add_u32 v5, v1, 4, v5
    s_lshl_b32 {sT}, {sP}, 2
    s_add_u32 {sT}, {sT}, {sS}
    s_lshl_b32 {sT}, {sT}, 5
    s_lshl_b32 {sT2}, {sKVH}, 1
    s_add_u32 {sT2}, {sT2}, {sB}
    s_add_u32 {sT}, {sT}, {sT2}
    s_mul_i32 {sM0}, {sT}, 1152
    s_add_u32 {sM0}, {sM0}, {PREC}
    s_lshl_b32 {sT}, {sU}, 7
    s_add_u32 {sM0}, {sM0}, {sT}
    """)
    if PR: a("s_setprio 0")
    spin("L_sp_wo", 8, 3, SPS, field=16)
    if stamps and not UD: a(f"s_memrealtime {ST(4)}")
    two = NWAVE == 8
    for half, (base, off) in enumerate(((24, 0), (44, 2*32))[:2 if two else 1]):
        if half == 1: a(f"s_cmp_gt_u32 {sW}, 5\ns_cbranch_scc0 L_op_one")
        for ks in range(4):
            a(f"ds_read_b64_tr_b16 v[{base+4*ks}:{base+1+4*ks}], v3 offset:{9216*ks+off}")
            a(f"ds_read_b64_tr_b16 v[{base+2+4*ks}:{base+3+4*ks}], v3 offset:{9216*ks+4608+off}")
    if two: a.lab("L_op_one")
    a("s_waitcnt lgkmcnt(0)\ns_barrier")
    for ks in range(4): a(f"ds_read2_b64 v[{8+4*ks}:{11+4*ks}], v7 offset0:{8*ks} offset1:{8*ks+4}")
    for ks in range(4):
        a(f"s_waitcnt lgkmcnt({3-ks})")
        c = "0" if ks == 0 else "v[40:43]"
        a(f"v_mfma_f32_16x16x32_bf16 v[40:43], v[{24+4*ks}:{27+4*ks}], v[{8+4*ks}:{11+4*ks}], {c}")
    if two:
        a("s_cbranch_scc0 L_op_st")
        for ks in range(4):
            c = "0" if ks == 0 else "v[60:63]"
            a(f"v_mfma_f32_16x16x32_bf16 v[60:63], v[{44+4*ks}:{47+4*ks}], v[{8+4*ks}:{11+4*ks}], {c}")
        a.lab("L_op_st")
    a("s_mov_b32 exec_lo, 0x00030003\ns_mov_b32 exec_hi, 0x00030003\ns_nop 5")
    for r in range(4): a(f"v_bfi_b32 v{40+r}, {sFF}, v{tv(r, vTg)}, v{40+r}")
    a(f"buffer_store_dwordx4 v[40:43], v5, {WS_}, {sM0} offen sc1")
    if DP: a(f"s_mov_b64 exec, -1\ns_cmp_gt_u32 {sW}, {9 - DP}\ns_cbranch_scc1 L_hop2")
    if two:
        a("s_cbranch_scc0 L_fin")
        for r in range(4): a(f"v_bfi_b32 v{60+r}, {sFF}, v{tv(r, vTg)}, v{60+r}")
        a(f"buffer_store_dwordx4 v[60:63], v5, {WS_}, {sM0} offen offset:256 sc1")
    a.mark("WARM_OFF")
    a.lab("L_fin")
    if amp:
        i0, i1, K = amp
        lo = lambda i: f"s{88+2*i}" if i < 7 else "s86"
        a(f"""
        s_cmp_eq_u32 s2, {ampid}
        s_cbranch_scc0 L_end
        s_cmp_eq_u32 {sW}, 5
        s_cbranch_scc0 L_end
        s_memrealtime s[86:87]
        s_waitcnt lgkmcnt(0)
        s_sub_u32 {sT}, {lo(i1)}, {lo(i0)}
        s_mul_i32 {sT}, {sT}, {K}
        s_min_u32 {sT}, {sT}, 100000
        """)
        a.lab("L_amp")
        a(f"s_memrealtime s[84:85]\ns_waitcnt lgkmcnt(0)\ns_sub_u32 {sT2}, s84, s86\ns_cmp_lt_u32 {sT2}, {sT}\ns_cbranch_scc1 L_amp")
    if stamps:
        a(f"""
        s_memrealtime s[86:87]
        s_cmp_gt_u32 {sW}, 7
        s_cbranch_scc1 L_end
        s_waitcnt lgkmcnt(0)
        s_mov_b64 exec, 1
        s_lshl_b32 {sT}, s2, 9
        s_lshl_b32 {sT2}, {sW}, 6
        s_add_u32 {sT}, {sT}, {sT2}
        s_add_u32 {sT}, {sT}, {STAMP}
        s_add_u32 s28, s28, {sT}
        s_addc_u32 s29, s29, 0
        v_mov_b32 v3, 0
        """)
        for i in range(7):
            a(f"v_mov_b32 v84, s{88+2*i}\nv_mov_b32 v85, s{89+2*i}\nglobal_store_dwordx2 v3, v[84:85], s[28:29] offset:{8*i}\ns_nop 1")
        a(f"v_mov_b32 v84, s86\nv_mov_b32 v85, s87\nglobal_store_dwordx2 v3, v[84:85], s[28:29] offset:56")
    a.lab("L_end")
    a("s_endpgm")
    a.lab("L_fb")
    a.c("the group is not (or not yet) seen complete on this die: publish and poll the memory-side copies as well")
    a(f"v_mov_b32 v7, 2\nds_write_b32 v{vFL}, v7 offset:4\nv_mov_b32 v7, 3\ns_mov_b32 {sTOG}, {DELTA}\ns_xor_b32 {sTTG}, {sTAG}, {sT4}\ns_waitcnt vmcnt(0)")
    q_remote()
    a("s_branch L_pq_k")

    a.lab("L_hi")
    a(f"s_cmp_eq_u32 {sW}, 4\ns_cbranch_scc0 L_567")
    a.c("wave 4: streams 8 groups of (32 KB K, 32 KB V) into a two-group LDS ring, swizzled for conflict-free reads")
    vKo = [4, 5, 6, 7]; vVo = [8, 9]
    a(f"""
    s_setprio {3 if PR else 1}
    v_lshrrev_b32 v1, 4, v0
    v_and_b32 v2, 15, v0
    v_xor_b32 v3, v2, v1
    v_lshlrev_b32 v3, 4, v3
    v_lshl_add_u32 v{vKo[0]}, v1, 8, v3
    v_xor_b32 v{vKo[1]}, 64, v{vKo[0]}
    v_xor_b32 v{vKo[2]}, 0x80, v{vKo[0]}
    v_xor_b32 v{vKo[3]}, 0xc0, v{vKo[0]}
    v_lshlrev_b32 v3, 1, v1
    v_xor_b32 v3, v2, v3
    v_lshlrev_b32 v3, 4, v3
    v_lshl_add_u32 v{vVo[0]}, v1, 8, v3
    v_xor_b32 v{vVo[1]}, 0x80, v{vVo[0]}
    s_lshl_b32 {sT}, {sB}, 4
    s_add_u32 {sT}, {sT}, {sKVH}
    s_lshl_b32 {sT}, {sT}, 2
    s_add_u32 {sT}, {sT}, {sS if LAY != 2 else 0}
    s_lshl_b32 {sT}, {sT}, 18
    s_mov_b32 s42, {0x40000 if LAY != 2 else 0x100000}
    s_mov_b32 s43, 0x20000
    s_mov_b32 s46, {0x40000 if LAY != 2 else 0x100000}
    s_mov_b32 s47, 0x20000
    s_cmp_eq_u32 {sP}, 0
    s_waitcnt lgkmcnt(0)
    s_cselect_b64 s[40:41], s[6:7], s[16:17]
    s_cselect_b64 s[44:45], s[8:9], s[18:19]
    s_add_u32 s40, s40, {sT}
    s_addc_u32 s41, s41, 0
    s_add_u32 s44, s44, {sT}
    s_addc_u32 s45, s45, 0
    """)
    a(eload)
    a(f"""
    s_mul_i32 {sKO}, {sS}, {(PH * 32768, PH * 16384, 32768 + PH * 131072, 0, 0)[LAY]}
    s_mov_b32 {sM0}, 0
    s_mov_b32 {sU}, 0
    v_mov_b32 v{vFL}, {FLG}
    v_mov_b32 v10, {-NT}
    v_mov_b32 v11, 0
    v_mov_b32 v16, 0
    """)
    a(f"s_lshl_b32 s72, {sJ}, 12")
    a("s_waitcnt lgkmcnt(0)\ns_barrier")
    stamp(1)
    a.lab("L_load")
    a(f"s_sub_u32 {sT}, {sU}, {FU}\ns_cmp_lt_u32 {sT}, {LU - FU}\ns_cselect_b64 vcc, -1, 0\ns_cselect_b32 s83, {NT - NTM}, 0")
    a(f"s_mov_b32 s73, {sM0}")
    for t in range(2):
        a(f"s_add_u32 s74, s73, 32768")
        a.lab(f"L_tile{t}")
        a(f"""
        s_mov_b32 m0, s73
        s_add_u32 {sT2}, {sKO}, s72
        s_add_u32 s72, s72, 4096
        s_and_b32 s72, s72, 0x7fff
        s_add_u32 s73, s73, 4096
        s_waitcnt lgkmcnt(0)
        v_readfirstlane_b32 s84, v16
        ds_read_b32 v16, v{vFL} offset:12
        """)
        for k in range(4):
            nb = 4*t + k
            a(f"s_cbranch_vccz L_nl{nb}\ns_waitcnt vmcnt({NHI})")
            if k in (0, 2): a(f"s_cmp_eq_u32 s84, 1\ns_cbranch_scc1 L_nl{nb}\ns_waitcnt vmcnt({NW-1})")
            a.lab(f"L_nl{nb}")
            a(f"s_waitcnt vmcnt({NWL})")
            if k == 0: a(f"v_add_u32 v12, s83, v10\nv_max_i32 v11, v11, v12\nds_write_b32 v{vFL}, v11\nv_add_u32 v10, 1, v10")
            vo = vKo[k] if t == 0 else vVo[k & 1]
            a(f"buffer_load_dwordx4 v{vo}, {K_ if t == 0 else V_}, {sT2} offen offset:{k*1024} {fl} lds")
        a(f"s_cmp_lt_u32 s73, s74\ns_cbranch_scc1 L_tile{t}")
    a(f"""
    s_add_u32 {sKO}, {sKO}, {(32768, 16384, 131072, 4096, 8192)[LAY]}
    s_and_b32 {sKO}, {sKO}, {(0x3ffff, 0x1ffff, 0xfffff, 0x7fff, 0x27fff)[LAY]}
    """)
    if LAY == 4: a(f"s_cmp_eq_u32 {sU}, 3\ns_cselect_b32 {sT}, 0x20000, 0\ns_or_b32 {sKO}, {sKO}, {sT}")
    a(f"""
    s_xor_b32 {sM0}, {sM0}, 0x10000
    s_add_u32 {sU}, {sU}, 1
    """)
    if UD:
        for k, u in zip((4, 5, 6), UD):
            a(f"s_cmp_eq_u32 {sU}, {u}\ns_cbranch_scc0 L_du{u}\ns_memrealtime {ST(k)}")
            a.lab(f"L_du{u}")
    a(f"""
    s_cmp_lt_u32 {sU}, 2
    s_cbranch_scc1 L_load
    s_cmp_eq_u32 {sU}, 8
    s_cbranch_scc1 L_ldone
    """)
    if HP: a(f"s_lshl_b32 {sNEED}, {sU}, 1\ns_sub_u32 {sNEED}, {sNEED}, 3")
    else: a(f"s_sub_u32 {sNEED}, {sU}, 1")
    minprog("L_free", sNEED, 12)
    a("s_branch L_load")
    a.lab("L_ldone")
    stamp(2)
    for j in range(NT, -1, -1):
        a(f"v_mov_b32 v11, {128-j}\ns_waitcnt vmcnt({4*j})\nds_write_b32 v{vFL}, v11")
    stamp(3)
    a("s_setprio 0")
    a(common); a(tagset)
    a("s_branch L_outproj")
    a.lab("L_567")
    a(f"""
    v_mov_b32 v4, 0
    v_lshlrev_b32 v3, 2, v0
    v_add_u32 v3, {FLG}, v3
    s_mov_b64 exec, 0xffff
    ds_write_b32 v3, v4
    s_mov_b64 exec, -1
    s_waitcnt lgkmcnt(0)
    """)
    a(eload); a(common)
    a("s_waitcnt lgkmcnt(0)\ns_barrier")
    a(tagset)
    if NWAVE > 8 and not W79:
        a(f"s_cmp_gt_u32 {sW}, 7\ns_cbranch_scc0 L_57")
        if TLB:
            a(f"""
            s_mul_i32 {sT}, {sP}, 40
            s_sub_u32 {sT2}, {sW}, 7
            s_lshl_b32 {sT2}, {sT2}, 3
            s_add_u32 {sT}, {sT}, {sT2}
            s_load_dwordx2 s[40:41], s[0:1], {sT}
            s_lshl_b32 {sT}, {sB}, 4
            s_add_u32 {sT}, {sT}, {sKVH}
            s_lshl_b32 {sT}, {sT}, 2
            s_add_u32 {sT}, {sT}, {sS}
            s_lshl_b32 {sT}, {sT}, 18
            s_waitcnt lgkmcnt(0)
            s_add_u32 s40, s40, {sT}
            s_addc_u32 s41, s41, 0
            s_mul_i32 {sKO}, {sS}, {PH * 32768}
            s_mov_b32 {sU}, {262144 // TLB}
            """)
            a.lab("L_tlb")
            a(f"""
            s_load_dword s42, s[40:41], {sKO}
            s_add_u32 {sKO}, {sKO}, {TLB}
            s_and_b32 {sKO}, {sKO}, 0x3ffff
            s_waitcnt lgkmcnt(0)
            s_sub_u32 {sU}, {sU}, 1
            s_cmp_lg_u32 {sU}, 0
            s_cbranch_scc1 L_tlb
            """)
        if NHI:
            a.c("wave 8: compares this workgroup's stream position with its group's; the loader keeps more loads in flight while it is behind")
            a(f"""
            s_cmp_eq_u32 {sW}, 8
            s_cbranch_scc0 L_sp_x
            s_lshl_b32 {sPO}, {sG}, 7
            s_add_u32 {sPO}, {sPO}, {PROG}
            s_lshl_b32 {sKO}, {sJ}, 2
            s_add_u32 {sKO}, {sKO}, {sPO}
            s_lshl_b32 {sC}, {sTL}, 8
            v_lshlrev_b32 v8, 2, v0
            v_mov_b32 v9, 0
            """)
            spin("L_sp_ct", 0, CST, 8)
            a.lab("L_ctl")
            a(f"""
            ds_read_b32 v6, v{vFL}
            s_waitcnt lgkmcnt(0)
            v_readfirstlane_b32 {sU}, v6
            v_or_b32 v7, {sC}, v6
            s_mov_b64 exec, 1
            buffer_store_dword v7, v9, {WS_}, {sKO} offen
            s_mov_b64 exec, 0xff
            s_sleep {SC}
            buffer_load_dword v10, v8, {WS_}, {sPO} offen sc1
            s_waitcnt vmcnt(0)
            v_subrev_u32 v10, {sC}, v10
            v_cmp_lt_u32 vcc, 0xff, v10
            s_cbranch_vccnz L_ctl_n
            v_readlane_b32 s72, v10, {sJ}
            v_readlane_b32 s73, v10, 0
            v_readlane_b32 s74, v10, 1
            v_readlane_b32 s75, v10, 2
            v_readlane_b32 s76, v10, 3
            v_readlane_b32 s80, v10, 4
            v_readlane_b32 s81, v10, 5
            v_readlane_b32 s82, v10, 6
            v_readlane_b32 s83, v10, 7
            s_add_u32 s73, s73, s74
            s_add_u32 s75, s75, s76
            s_add_u32 s80, s80, s81
            s_add_u32 s82, s82, s83
            s_add_u32 s73, s73, s75
            s_add_u32 s80, s80, s82
            s_add_u32 s73, s73, s80
            s_lshl_b32 s72, s72, 3
            s_add_u32 s72, s72, {TH}
            s_cmp_lt_u32 s72, s73
            s_cselect_b32 s73, 1, 0
            v_mov_b32 v11, s73
            ds_write_b32 v{vFL}, v11 offset:12
            """)
            a.lab("L_ctl_n")
            a(f"s_mov_b64 exec, -1\ns_cmp_lt_u32 {sU}, {CEND}\ns_cbranch_scc1 L_ctl")
        spin("L_sp_x", 0, 128 - NT, 8)
        a("s_branch L_outproj")
        a.lab("L_57")
    vWo = 84
    if WARM: a(f"s_cmp_eq_u32 {sW}, 7\ns_cbranch_scc0 L_warmed\ns_mov_b64 exec, 0\ns_branch L_w0")
    a.lab("L_warmed")
    a.c("waves 5-7: twelve 1 KB pieces each of the 128 x 288 B slice of wo")
    a(f"""
    s_mul_i32 {sT}, {sP}, 40
    s_add_u32 {sT}, {sT}, 32
    s_load_dwordx2 s[60:61], s[0:1], {sT}
    s_sub_u32 {sN}, {sW}, {7 if W79 else 5}
    s_mul_i32 {sN}, {sN}, 768
    v_add_u32 v5, {sN}, v0
    s_mul_i32 {sN}, {sN}, 16
    s_mov_b32 {sT}, 3641
    s_movk_i32 {sT2}, 864
    """)
    for i in range(12):
        a(f"""
        v_add_u32 v3, {64*i}, v5
        v_mul_lo_u32 v4, v3, {sT}
        v_lshrrev_b32 v4, 16, v4
        v_mul_lo_u32 v4, v4, {sT2}
        v_lshl_add_u32 v{vWo+i}, v3, 4, v4
        """)
    a(f"""
    s_lshl_b32 {sT}, {sKVH}, 1
    s_add_u32 {sT}, {sT}, {sB}
    s_mul_i32 {sT}, {sT}, {128*1152}
    s_mul_i32 {sT2}, {sS}, 288
    s_add_u32 {sT}, {sT}, {sT2}
    s_waitcnt lgkmcnt(0)
    s_add_u32 s60, s60, {sT}
    s_addc_u32 s61, s61, 0
    s_mov_b32 s62, {127*1152+288}
    s_mov_b32 s63, 0x20000
    s_cmp_eq_u32 {sW}, 6
    s_cbranch_scc1 L_comb
    s_cmp_eq_u32 {sW}, 5
    s_cbranch_scc1 L_hop1
    """)
    def wo_issue(tag):
        spin(f"L_sp_a{tag}", 0, 128 - NT - 8, 8)
        spin(f"L_sp_b{tag}", 0, 128 - WOGO, 0)
        minprog(f"L_sp_c{tag}", 14 if HP else 7, 100)
        stamp(1)
        for i in range(12): a(f"s_add_u32 m0, {sN}, {i*1024}\ns_nop 0\nbuffer_load_dwordx4 v{vWo+i}, {WO_}, 0 offen {fl} lds")
        stamp(2)
    def wo_done(n):
        a(f"v_mov_b32 v4, 0x10000\ns_waitcnt vmcnt({n})\ns_mov_b64 exec, 1\nds_add_u32 v{vFL}, v4 offset:8\ns_mov_b64 exec, -1")
    wo_issue(7); wo_done(0)
    a("s_branch L_outproj")
    a.lab("L_comb")
    a.c("wave 6: merge the four consumers (online-softmax states), publish o / l and log2-sum-exp")
    a(f"""
    v_lshlrev_b32 v8, 4, v0
    v_add_u32 v8, {COMB}, v8
    v_lshlrev_b32 v9, 3, v0
    v_add_u32 v9, {MLA}, v9
    v_and_b32 v10, 1, v2
    v_lshlrev_b32 v10, 9, v10
    v_lshrrev_b32 v11, 1, v2
    v_lshl_add_u32 v10, v11, 6, v10
    v_lshl_add_u32 v10, v1, 4, v10
    v_lshlrev_b32 v11, 4, v0
    v_add_u32 v11, 1024, v11
    s_lshl_b32 {sT}, {sG}, 3
    s_add_u32 {sT}, {sT}, {sJ}
    s_mul_i32 {sM0}, {sT}, 1152
    s_add_u32 {sM0}, {sM0}, {OREC}
    s_add_u32 {sKO}, {sM0}, {DELTA}
    v_mov_b32 v82, {sTL}
    """)
    if PR: a(f"s_setprio {PR}")
    spin("L_sp_m6", 4, 1, 8)
    a(f"s_and_b32 {sLAST}, {sT}, 2")
    if W79: spin("L_sp_a6", 0, 128 - NT - 8, 8)
    else: wo_issue(6)
    a.mark("WARM_ON")
    spin("L_sp_ml", 8, 4, 0, field=0)
    vA4 = 16; vML = 32
    for w in range(4): a(f"ds_read_b64 v[{vML+2*w}:{vML+2*w+1}], v9 offset:{512*w}")
    a(f"s_waitcnt lgkmcnt(0)\nv_max3_f32 v40, v{vML}, v{vML+2}, v{vML+4}\nv_max_f32 v40, v40, v{vML+6}")
    for w in range(4): a(f"v_sub_f32 v{vML+2*w}, v{vML+2*w}, v40")
    for w in range(4): a(f"v_exp_f32 v{vML+2*w}, v{vML+2*w}")
    a(f"""
    s_nop 0
    v_mul_f32 v41, v{vML}, v{vML+1}
    v_fmac_f32 v41, v{vML+2}, v{vML+3}
    v_fmac_f32 v41, v{vML+4}, v{vML+5}
    v_fmac_f32 v41, v{vML+6}, v{vML+7}
    v_rcp_f32 v42, v41
    v_log_f32 v43, v41
    s_nop 0
    v_add_f32 v43, v43, v40
    v_bfi_b32 v48, {sFF}, v82, v43
    v_bfi_b32 v52, {sFF}, v{vTg}, v43
    v_bfi_b32 v49, {sFF}, v{vTK[1]}, v43
    v_bfi_b32 v50, {sFF}, v{vTK[2]}, v43
    v_bfi_b32 v51, {sFF}, v{vTK[3]}, v43
    s_mov_b64 exec, 3
    buffer_store_dwordx4 v[48:51], v11, {WS_}, {sKO} offen
    s_cmp_eq_u32 {sLAST}, 0
    s_cbranch_scc1 L_pub1
    v_mov_b32 v53, v49
    v_mov_b32 v54, v50
    v_mov_b32 v55, v51
    buffer_store_dwordx4 v[52:55], v11, {WS_}, {sM0} offen sc1
    """)
    a.lab("L_pub1")
    a("s_mov_b64 exec, -1")
    for w in range(4): a(f"v_mul_f32 v{vML+2*w}, v{vML+2*w}, v42")
    spin("L_sp_acc", 8, 4, 0, field=8)
    for w in range(4): a(f"ds_read_b128 v[{vA4+4*w}:{vA4+4*w+3}], v8 offset:{1024*w}")
    for w in range(4):
        a(f"s_waitcnt lgkmcnt({3-w})")
        for h in range(2):
            if w == 0: a(f"v_pk_mul_f32 v[{44+2*h}:{45+2*h}], v[{vA4+2*h}:{vA4+2*h+1}], v[{vML}:{vML+1}] op_sel_hi:[1,0]")
            else: a(f"v_pk_fma_f32 v[{44+2*h}:{45+2*h}], v[{vA4+4*w+2*h}:{vA4+4*w+2*h+1}], v[{vML+2*w}:{vML+2*w+1}], v[{44+2*h}:{45+2*h}] op_sel_hi:[1,0,1]")
    for r in range(4): a(f"v_bfi_b32 v{56+r}, {sFF}, v{tv(r, 82)}, v{44+r}")
    a(f"buffer_store_dwordx4 v[56:59], v10, {WS_}, {sKO} offen\ns_cmp_eq_u32 {sLAST}, 0\ns_cbranch_scc1 L_pub2")
    for r in range(4): a(f"v_bfi_b32 v{44+r}, {sFF}, v{tv(r, vTg)}, v{44+r}")
    a(f"buffer_store_dwordx4 v[44:47], v10, {WS_}, {sM0} offen sc1")
    a.lab("L_pub2")
    stamp(3)
    if W79: a(f"v_mov_b32 v4, 0x1000000\ns_mov_b64 exec, 1\nds_add_u32 v{vFL}, v4 offset:8\ns_mov_b64 exec, -1")
    else: wo_done(2)
    a.mark("WARM_OFF")
    a("s_branch L_outproj")
    a.lab("L_hop1")
    a.c("wave 5: gather the group's eight records for one q head, merge the key quarters, later sum 32 tile partials")
    a(f"""
    v_lshrrev_b32 v12, 5, v0
    v_mul_u32_u24 v12, {4*1152}, v12
    v_and_b32 v6, 31, v0
    v_lshl_add_u32 v8, v6, 4, v12
    s_lshl_b32 {sT}, {sB}, 9
    v_add_u32 v8, {sT}, v8
    s_lshl_b32 {sT}, {sB}, 4
    s_add_u32 {sT}, {sT}, 1024
    v_add_u32 v12, {sT}, v12
    v_lshlrev_b32 v56, 3, v0
    v_add_u32 v56, {OLDS}, v56
    s_mul_i32 {sPO}, {sG}, {8*1152}
    s_add_u32 {sPO}, {sPO}, {OREC + DELTA}
    """)
    a(finset)
    if PR: a(f"s_setprio {PR}")
    spin("L_sp_m5", 4, 1, 8)
    a(f"""
    s_mov_b32 {sTAG}, {tagL}
    s_xor_b32 {sTTG}, {sTAG}, {sT4}
    s_bitcmp1_b32 {sT}, 1
    s_cselect_b32 {sTOG}, {DELTA}, 0
    s_cselect_b32 {sTTG}, {sTTG}, 0
    """)
    if W79:
        spin("L_sp_a5", 0, 128 - NT - 8, 8)
        a.mark("WARM_ON")
        spin("L_sp_b5", 8, 1, 0, field=24)
        if S1: a(f"s_sleep {S1}")
    else:
        wo_issue(5)
        a.mark("WARM_ON")
        wo_done(0)
    stamp(4)
    loads = [(32 + 4*i, 12, 1152*i) for i in range(4)] + [(vD + 4*i, 8, 1152*i) for i in range(4)]
    poll("L_pl", loads if MERGE else loads[:4], alt=True)
    a(f"""
    v_max3_f32 v48, v32, v36, v40
    v_max_f32 v48, v48, v44
    v_sub_f32 v49, v32, v48
    v_sub_f32 v50, v36, v48
    v_sub_f32 v51, v40, v48
    v_sub_f32 v52, v44, v48
    v_exp_f32 v32, v49
    v_exp_f32 v34, v50
    v_exp_f32 v36, v51
    v_exp_f32 v38, v52
    v_add_f32 v48, v32, v34
    v_add_f32 v53, v36, v38
    v_add_f32 v48, v48, v53
    v_rcp_f32 v48, v48
    """)
    if not MERGE: poll("L_po", loads[4:], alt=True)
    stamp(5)
    for h in range(2): a(f"v_pk_mul_f32 v[{60+2*h}:{61+2*h}], v[{vD+2*h}:{vD+2*h+1}], v[32:33] op_sel_hi:[1,0]")
    for s_ in range(1, 4):
        for h in range(2): a(f"v_pk_fma_f32 v[{60+2*h}:{61+2*h}], v[{vD+4*s_+2*h}:{vD+4*s_+2*h+1}], v[{32+2*s_}:{33+2*s_}], v[{60+2*h}:{61+2*h}] op_sel_hi:[1,0,1]")
    for h in range(2): a(f"v_pk_mul_f32 v[{60+2*h}:{61+2*h}], v[{60+2*h}:{61+2*h}], v[48:49] op_sel_hi:[1,0]")
    a(f"""
    v_cvt_pk_bf16_f32 v60, v60, v61
    v_cvt_pk_bf16_f32 v61, v62, v63
    ds_write_b64 v56, v[60:61]
    s_waitcnt lgkmcnt(0)
    s_barrier
    """)
    a.lab("L_hop2")
    a(f"s_cmp_lt_u32 s73, 9\ns_cbranch_scc0 L_fin\ns_mov_b32 {sPO}, s72")
    poll("L_pp", [(vD + 4*i, 57, 1152*i) for i in range(4)])
    stamp(6)
    for d in range(2): a(f"v_pk_add_f32 v[{48+2*d}:{49+2*d}], v[{16+2*d}:{17+2*d}], v[{20+2*d}:{21+2*d}]\nv_pk_add_f32 v[{52+2*d}:{53+2*d}], v[{24+2*d}:{25+2*d}], v[{28+2*d}:{29+2*d}]")
    for d in range(2): a(f"v_pk_add_f32 v[{48+2*d}:{49+2*d}], v[{48+2*d}:{49+2*d}], v[{52+2*d}:{53+2*d}]")
    a(f"""
    s_nop 1
    v_permlane32_swap_b32 v48, v50
    v_permlane32_swap_b32 v49, v51
    v_add_f32 v48, v48, v50
    v_add_f32 v49, v49, v51
    s_nop 1
    v_permlane16_swap_b32 v48, v49
    v_add_f32 v48, v48, v49
    s_nop 1
    v_add_f32_dpp v49, v48, v48 row_ror:8 row_mask:0xf bank_mask:0xf
    v_cvt_pk_bf16_f32 v49, v49, v49
    s_mov_b32 exec_lo, 0x00ff00ff
    s_mov_b32 exec_hi, 0x00ff00ff
    buffer_store_short v49, v58, {OUT_}, 0 offen
    """)
    a.mark("WARM_OFF")
    a.c("every workgroup of this problem has read the epoch by now: advance it for the next launch")
    a(f"""
    s_or_b32 {sT}, {sKVH}, {sS}
    s_xor_b32 {sT2}, {sW}, 5
    s_or_b32 {sT}, {sT}, {sT2}
    s_cmp_eq_u32 {sT}, 0
    s_cbranch_scc0 L_fin
    s_mov_b64 exec, 1
    v_mov_b32 v48, {sE}
    s_lshl_b32 {sT}, {sP}, 8
    v_mov_b32 v49, {sT}
    buffer_store_dword v48, v49, {WS_}, 0 offen
    s_branch L_fin
    """)
    head = HEADER + f"; @launch grid=(256,1,1) block=({64*NWAVE},1,1) lds={LDSSZ}\n"
    head += f'.amdgcn_target "amdgcn-amd-amdhsa--gfx950"\n.text\n.globl {NAME}\n.p2align 8\n.type {NAME},@function\n'
    tail = f""".section .rodata,"a"
.p2align 6
.amdhsa_kernel {NAME}
  .amdhsa_next_free_vgpr 152
  .amdhsa_next_free_sgpr 102
  .amdhsa_accum_offset 152
  .amdhsa_group_segment_fixed_size 0
  .amdhsa_kernarg_size 104
  .amdhsa_user_sgpr_count 2
  .amdhsa_user_sgpr_kernarg_segment_ptr 1
  .amdhsa_system_sgpr_workgroup_id_x 1
.end_amdhsa_kernel
"""
    lines = a.L
    if WARM:
        lines, n = add_pads(lines, head, "L_w0:\n" + tail, WARM)
        lines += [f"L_w{n}:", "    s_mov_b64 exec, -1", "    s_branch L_warmed"]
    else:
        lines = [l for l in lines if not l.strip().startswith(";@")]
    return head + "\n".join(lines) + "\n" + tail

if __name__ == "__main__":
    for name, kw in eval(sys.argv[1]).items():
        open(name, "w").write(gen(**kw))
        print("wrote", name)
```

```python
import sys, struct, subprocess, re
NAME = "concat_heads__gqa_block_cached__gqa_block_cached__decode_kernel"
def f2u(x): return struct.unpack("<I", struct.pack("<f", x))[0]
HEADER = open("concat_heads__gqa_block_cached__gqa_block_cached__decode.s.ref").read().split("; Override launch")[0]

PROG = 0x8000
GPRG = 0xa000
QREC = 0x10000
OREC = 0x100000
PREC = 0x180000
DELTA = 0x200000
WSSZ = 0x400000
STAMP = 0x8000000
QLDS = 131072
OLDS = QLDS + 512
COMB = OLDS + 512
MLA  = COMB + 4096
XLDS = MLA + 2048
FLG  = XLDS + 2048
LDSSZ = FLG + 64

class G:
    def __init__(s): s.L = []
    def __call__(s, t):
        for line in t.strip().split("\n"): s.L.append("    " + line.strip())
    def lab(s, n): s.L.append(n + ":")
    def mark(s, n): s.L.append("    ;@" + n)
    def c(s, t): s.L.append("    ; " + t)

def sizes_of(lines, head, tail):
    open("_g.s", "w").write(head + "\n".join(lines) + "\n" + tail)
    subprocess.run(["clang", "-x", "assembler", "-target", "amdgcn-amd-amdhsa", "-mcpu=gfx950", "-c", "_g.s", "-o", "_g.o"], check=True)
    out = subprocess.run(["llvm-objdump", "-d", "--mcpu=gfx950", "_g.o"], capture_output=True, text=True).stdout
    return [4 * len(m.group(1).split()) for m in re.finditer(r"// [0-9A-F]{12}: ((?:[0-9A-F]{8} ?)+)", out)]

def add_pads(lines, head, tail, gap):
    sz = sizes_of(lines, head, tail); k = 0; out = []; on = False; acc = 0; n = 0
    for ln in lines:
        t = ln.strip()
        if t == ";@WARM_ON": on = True; acc = gap; continue
        if t == ";@WARM_OFF": on = False; continue
        if t.endswith(":") or t.startswith(";") or not t: out.append(ln); continue
        if on and acc + sz[k] + 4 > gap:
            out.append(f"L_w{n}:"); out.append(f"    s_cbranch_execz L_w{n+1}"); n += 1; acc = 4
        if on: acc += sz[k]
        out.append(ln); k += 1
    assert k == len(sz), (k, len(sz))
    return out, n

def gen(NW=20, NWL=48, FU=1, LU=7, REL=1, WOGO=None, KA=6, PH=1, WARM=64, NWAVE=10, MERGE=1, FORCE=0, LAY=0, RB=1, TR=3, TX=0, PR=0, SPS=0, W79=1, S1=0, TLB=0, NWF=None, DP=0, QD=0, QSL=0, HP=0, SR=3, UD=None, NHI=26, TH=0, SC=8, CEND=104, CST=20, ACK=0, HS=0, PS=0, HA=1, HACK=0, SP1=12, SP2=20, PB=0, PBA=0, SC2=12,
        stamps=False, LIMIT=2097151, amp=None, ampid=0, fl="nt"):
    a = G()
    NT = (NWL + 3) // 4; NTM = ((NHI or NW) + 3) // 4
    if WOGO is None: WOGO = NT
    sG, sJ, sP, sKVH, sB, sS, sW, sT, sT2 = "s30", "s31", "s32", "s33", "s34", "s35", "s36", "s37", "s38"
    sPO, sLAST = "s16", "s17"
    sE, sT4, sC, sU, sKO, sM0, sCNT, sFF = "s39", "s3", "s4", "s5", "s7", "s8", "s9", "s10"
    sN, sNEED, sTL, sTAG, sTOG, sTTG, sQO = "s19", "s20", "s21", "s71", "s68", "s69", "s70"
    K_, V_, WS_, X_, WQ_, WO_, OUT_ = "s[40:43]", "s[44:47]", "s[48:51]", "s[52:55]", "s[56:59]", "s[60:63]", "s[64:67]"
    ST = lambda i: f"s[{88+2*i}:{89+2*i}]"
    vTg = 80; vFL = 81; vTL = 76
    sTK = [None, "s77", "s78", "s79"]; vTK = [None, 148, 149, 150]
    tv = lambda k, v0: v0 if k == 0 else vTK[k]
    def stamp(i):
        if stamps or amp: a(f"s_memrealtime {ST(i)}")
    def spin(name, off, want, sleep, field=None):
        a.lab(name)
        if sleep: a(f"s_sleep {sleep}")
        a(f"ds_read_b32 v6, v{vFL} offset:{off}\ns_waitcnt lgkmcnt(0)\nv_readfirstlane_b32 {sT}, v6\ns_nop 0")
        if field is not None: a(f"s_bfe_u32 {sT}, {sT}, {(8 << 16) | field:#x}")
        a(f"s_cmp_lt_u32 {sT}, {want}\ns_cbranch_scc1 {name}")
    def minprog(name, want, r):
        a.lab(name)
        a(f"""
        ds_read_b128 v[{r}:{r+3}], v{vFL} offset:16
        s_waitcnt lgkmcnt(0)
        v_min_u32 v{r}, v{r}, v{r+1}
        v_min3_u32 v{r}, v{r}, v{r+2}, v{r+3}
        s_nop 0
        v_readfirstlane_b32 {sT}, v{r}
        s_nop 0
        s_cmp_lt_u32 {sT}, {want}
        s_cbranch_scc1 {name}
        """)
    def poll(name, loads, alt=False, fallback=None, gap=0):
        n = len(loads); tag = sTAG if alt else sT4
        a(f"s_mov_b32 {sCNT}, {LIMIT}")
        a.lab(name)
        if gap: a(f"s_sleep {gap}")
        for (d, vo, imm) in loads:
            o = f" offset:{imm}" if imm else ""
            a(f"buffer_load_dwordx4 v[{d}:{d+3}], v{vo}, {WS_}, {sPO} offen{o} sc1")
        a(f"s_sub_u32 {sCNT}, {sCNT}, 1\ns_cbranch_scc1 {name}_d")
        if fallback:
            a(f"s_cmp_eq_u32 {sCNT}, {LIMIT - KA}\ns_cbranch_scc1 {fallback}")
            a.lab(name + "_k")
        for i, (d, vo, imm) in enumerate(loads):
            a(f"s_waitcnt vmcnt({n-1-i})")
            for k in range(4): a(f"v_xor_b32 v{d+k}, {tag if k == 0 else sTK[k]}, v{d+k}")
            if i == 0: a(f"v_or3_b32 v6, v{d}, v{d+1}, v{d+2}\nv_or_b32 v6, v6, v{d+3}")
            else: a(f"v_or3_b32 v6, v6, v{d}, v{d+1}\nv_or3_b32 v6, v6, v{d+2}, v{d+3}")
        a(f"v_and_b32 v6, 0xff, v6\nv_cmp_ne_u32 vcc, 0, v6")
        if alt: a(f"s_xor_b32 {sPO}, {sPO}, {sTOG}\ns_xor_b32 {sTAG}, {sTAG}, {sTTG}")
        a(f"s_cbranch_vccnz {name}")
        a.lab(name + "_d")
    def q_remote():
        for c in range(4): a(f"v_bfi_b32 v{64+c}, {sFF}, v{tv(c, vTg)}, v{72+c}")
        a(f"""
        s_mov_b32 exec_lo, 0x00ff00ff
        s_mov_b32 exec_hi, 0x00ff00ff
        buffer_store_dwordx4 v[64:67], v5, {WS_}, {sQO} offen sc1
        s_mov_b64 exec, -1
        """)
    common = f"""
    s_mov_b32 s48, s28
    s_mov_b32 s49, s29
    s_mov_b32 s50, {WSSZ}
    s_mov_b32 s51, 0x20000
    v_lshrrev_b32 v1, 4, v0
    v_and_b32 v2, 15, v0
    v_mov_b32 v{vFL}, {FLG}
    s_mov_b32 {sFF}, 0xff
    """
    eload = f"s_lshl_b32 {sT2}, {sP}, 8\ns_load_dword {sE}, s[28:29], {sT2}"
    tagset = f"""
    s_add_u32 {sE}, {sE}, 1
    s_and_b32 {sT4}, {sE}, 0xff
    s_bfe_u32 {sTK[1]}, {sE}, 0x80008
    s_bfe_u32 {sTK[2]}, {sE}, 0x80010
    s_lshr_b32 {sTK[3]}, {sE}, 24
    v_mov_b32 v{vTg}, {sT4}
    v_mov_b32 v{vTK[1]}, {sTK[1]}
    v_mov_b32 v{vTK[2]}, {sTK[2]}
    v_mov_b32 v{vTK[3]}, {sTK[3]}
    s_getreg_b32 {sTL}, hwreg(HW_REG_XCC_ID)
    s_and_b32 {sTL}, {sTL}, 7
    s_lshl_b32 {sTL}, {sTL}, 5
    s_add_u32 {sTL}, {sTL}, {sE}
    s_lshl_b32 s85, {sTL}, 8
    s_and_b32 {sTL}, {sTL}, 0xff
    """
    finset = f"""
    v_lshrrev_b32 v57, 3, v0
    v_mul_u32_u24 v57, {4*1152}, v57
    v_and_b32 v58, 7, v0
    v_lshl_add_u32 v57, v58, 4, v57
    v_lshrrev_b32 v5, 2, v58
    v_mul_u32_u24 v5, 1152, v5
    v_and_b32 v58, 3, v58
    v_lshl_add_u32 v58, v58, 2, v1
    s_mul_i32 {sT}, {sP}, 576
    s_mul_i32 {sT2}, {sS}, 144
    s_add_u32 {sT}, {sT}, {sT2}
    s_lshl_b32 {sT2}, {sKVH}, 4
    s_add_u32 {sT}, {sT}, {sT2}
    v_add3_u32 v58, v58, v5, {sT}
    v_lshlrev_b32 v58, 1, v58
    s_mov_b32 s64, s24
    s_mov_b32 s65, s25
    s_mov_b32 s66, 4608
    s_mov_b32 s67, 0x20000
    s_lshl_b32 {sT}, {sP}, 2
    s_add_u32 {sT}, {sT}, {sS}
    s_mul_i32 s72, {sT}, {32*1152}
    s_lshl_b32 {sT}, {sKVH}, 7
    s_add_u32 s72, s72, {sT}
    s_add_u32 s72, s72, {PREC}
    s_lshl_b32 {sT}, {sB}, 4
    s_add_u32 s73, {sT}, {sKVH}
    """
    tagL = sTL if not FORCE else "0x5b"
    a.L.append(f"{NAME}:")
    a.c("256 workgroups, one per CU; group = 8 workgroups sharing (problem, kv head).")
    a.c("Hand-offs between workgroups go through d_ws as 16-byte granules whose dwords carry the four bytes of a launch")
    a.c("epoch (word read from d_ws at entry, plus one) in their low bytes; readers strip the tags, so results do not depend on it.")
    a(f"""
    s_load_dwordx16 s[4:19], s[0:1], 0
    s_load_dwordx8 s[20:27], s[0:1], 64
    s_load_dwordx2 s[28:29], s[0:1], 96
    s_cmp_ge_u32 s2, 256
    s_cbranch_scc1 L_end
    """)
    stamp(0)
    a.c("workgroup -> problem p, kv head, member j = (batch, key quarter) = (q head, column quarter)")
    a(f"""
    v_lshrrev_b32 v1, 6, v0
    v_and_b32 v0, 63, v0
    s_lshr_b32 {sP}, s2, 7
    v_readfirstlane_b32 {sW}, v1
    s_and_b32 {sKVH}, s2, 7
    s_bfe_u32 {sT}, s2, 0x10006
    s_lshl_b32 {sT}, {sT}, 3
    s_or_b32 {sKVH}, {sKVH}, {sT}
    s_bfe_u32 {sJ}, s2, 0x30003
    s_lshl_b32 {sG}, {sP}, 4
    s_or_b32 {sG}, {sG}, {sKVH}
    s_bfe_u32 {sB}, s2, 0x10005
    s_bfe_u32 {sS}, s2, 0x20003
    s_cmp_ge_u32 {sW}, 4
    s_cbranch_scc1 L_hi
    """)
    a.c("waves 0-3: rows 72j..72j+71 of wq, 64 columns per wave, both batches")
    vX = 8; vWq = 28; vQa = 64
    a(f"""
    v_lshrrev_b32 v3, 3, v0
    v_and_b32 v4, 7, v0
    v_lshlrev_b32 v6, 13, v3
    v_lshl_add_u32 v6, v4, 4, v6
    s_mul_i32 {sT}, {sJ}, {72*8192}
    s_lshl_b32 {sT2}, {sKVH}, 9
    s_add_u32 {sT}, {sT}, {sT2}
    s_lshl_b32 {sT2}, {sW}, 7
    s_add_u32 {sT}, {sT}, {sT2}
    s_mov_b32 s58, {576*8192}
    s_mov_b32 s59, 0x20000
    s_cmp_eq_u32 {sP}, 0
    s_waitcnt lgkmcnt(0)
    s_cselect_b64 s[56:57], s[10:11], s[20:21]
    s_cselect_b64 s[52:53], s[4:5], s[14:15]
    """)
    for i in range(9):
        a(f"buffer_load_dwordx4 v[{vWq+4*i}:{vWq+4*i+3}], v6, {WQ_}, {sT} offen {fl}")
        if i < 8: a(f"s_add_u32 {sT}, {sT}, 65536")
    a(f"""
    s_mov_b32 s54, 2304
    s_mov_b32 s55, 0x20000
    v_lshlrev_b32 v5, 4, v0
    v_cmp_lt_u32 vcc, 8, v0
    v_add_u32 v7, {1152-144}, v5
    s_lshl_b32 {sT}, {sW}, 9
    s_add_u32 m0, {sT}, {XLDS}
    v_cndmask_b32 v5, v5, v7, vcc
    s_mul_i32 {sT2}, {sJ}, 144
    s_mov_b64 exec, 0x3ffff
    buffer_load_dwordx4 v5, {X_}, {sT2} offen lds
    s_mov_b64 exec, -1
    """)
    if REL: a(f"s_waitcnt vmcnt({10-REL})")
    a(f"s_barrier\ns_add_u32 {sT}, {sT}, {XLDS}\nv_lshl_add_u32 v5, v3, 1, {sT}")
    a(eload); a(common)
    for i in range(18): a(f"v_mov_b32 v{vX+i}, 0")
    for i in range(16): a(f"v_mov_b32 v{vQa+i}, 0")
    a("s_waitcnt vmcnt(0) lgkmcnt(0)")
    if UD: a(f"s_memrealtime {ST(4)}")
    a.mark("WARM_ON")
    for i in range(9):
        for b in range(2): a(f"ds_read_u16_d16_hi v{vX+2*i+b}, v5 offset:{16*i+144*b}")
    a(tagset)
    for i in range(9):
        a(f"s_waitcnt lgkmcnt({min(15, 16-2*i)})")
        for d in range(4):
            w = vWq + 4*i + d
            a(f"""
            v_lshlrev_b32 v82, 16, v{w}
            v_and_b32 v83, 0xffff0000, v{w}
            v_pk_fma_f32 v[{vQa+4*d}:{vQa+4*d+1}], v[{vX+2*i}:{vX+2*i+1}], v[82:83], v[{vQa+4*d}:{vQa+4*d+1}] op_sel:[0,0,0] op_sel_hi:[1,0,1]
            v_pk_fma_f32 v[{vQa+4*d+2}:{vQa+4*d+3}], v[{vX+2*i}:{vX+2*i+1}], v[82:83], v[{vQa+4*d+2}:{vQa+4*d+3}] op_sel:[0,1,0] op_sel_hi:[1,1,1]
            """)
    a(f"""
    s_lshl_b32 {sT}, {sG}, 3
    s_add_u32 {sT}, {sT}, {sJ}
    s_lshl_b32 {sT}, {sT}, 11
    s_lshl_b32 {sT2}, {sW}, 8
    s_add_u32 {sT}, {sT}, {sT2}
    """)
    for c in range(8): a(f"v_permlane32_swap_b32 v{vQa+2*c}, v{vQa+2*c+1}")
    for c in range(8): a(f"v_add_f32 v{vQa+2*c}, v{vQa+2*c}, v{vQa+2*c+1}")
    a(f"s_add_u32 {sQO}, {sT}, {QREC}\ns_add_u32 {sT}, {sQO}, {DELTA}")
    for c in range(4): a(f"v_permlane16_swap_b32 v{vQa+2*c}, v{vQa+8+2*c}")
    for c in range(4): a(f"v_add_f32 v{vQa+2*c}, v{vQa+2*c}, v{vQa+8+2*c}")
    a(f"""
    v_lshrrev_b32 v5, 5, v0
    v_lshlrev_b32 v5, 10, v5
    v_lshl_add_u32 v5, v4, 5, v5
    v_and_b32 v6, 1, v1
    v_lshl_add_u32 v5, v6, 4, v5
    """)
    for c in range(4): a(f"v_add_f32_dpp v{72+c}, v{vQa+2*c}, v{vQa+2*c} row_ror:8 row_mask:0xf bank_mask:0xf")
    a(f"v_mov_b32 v{vTL}, {sTL}")
    for c in range(4): a(f"v_bfi_b32 v{64+c}, {sFF}, v{tv(c, vTL)}, v{72+c}")
    a(f"""
    s_mov_b32 exec_lo, 0x00ff00ff
    s_mov_b32 exec_hi, 0x00ff00ff
    buffer_store_dwordx4 v[64:67], v5, {WS_}, {sT} offen
    s_mov_b64 exec, -1
    """)
    if UD: a(f"s_memrealtime {ST(5)}")
    if not QD: a(f"s_cmp_eq_u32 {sW}, 0\ns_cbranch_scc0 L_cset")
    def gather(vo, vD):
        a.c("wave 0: sum the eight partials of this batch; die-tagged copy first, memory-side copy after KA misses")
        a(f"""
        s_lshl_b32 {sPO}, {sG}, 14
        s_lshl_b32 {sT2}, {sB}, 10
        s_add_u32 {sPO}, {sPO}, {sT2}
        s_add_u32 {sPO}, {sPO}, {QREC + DELTA}
        v_lshlrev_b32 v{vo}, 4, v0
        s_mov_b32 {sTAG}, {tagL}
        s_mov_b32 {sTOG}, 0
        s_mov_b32 {sTTG}, 0
        v_mov_b32 v7, 1
        """)
        for i in range(1, 4): a(f"v_add_u32 v{vo+i}, {4096*i}, v{vo}")
        if not QD: a("s_waitcnt vmcnt(0)")
        elif QSL: a(f"s_sleep {QSL}")
        poll("L_pq", [(vD + 4*i, vo + (i >> 1), 2048*(i & 1)) for i in range(8)], alt=True, fallback="L_fb")
        for st in (4, 2, 1):
            for jj in range(st):
                for d in range(2): a(f"v_pk_add_f32 v[{vD+4*jj+2*d}:{vD+4*jj+2*d+1}], v[{vD+4*jj+2*d}:{vD+4*jj+2*d+1}], v[{vD+4*(jj+st)+2*d}:{vD+4*(jj+st)+2*d+1}]")
        a(f"""
        v_cvt_pk_bf16_f32 v{vD}, v{vD}, v{vD+1}
        v_cvt_pk_bf16_f32 v{vD+1}, v{vD+2}, v{vD+3}
        v_lshlrev_b32 v6, 3, v0
        v_add_u32 v6, {QLDS}, v6
        ds_write_b64 v6, v[{vD}:{vD+1}]
        ds_write_b32 v{vFL}, v7 offset:4
        """)
    vD = 16
    if not QD: gather(8, 16)
    a.lab("L_cset")
    a.c("consumers: wave c takes keys 32c..32c+31 of every group of 128")
    vKa = [10, 11, 12, 13]; vVa = list(range(14, 22)); vMask = list(range(22, 30))
    vM, vLs, vT, vU, vA = 30, 31, 32, 33, 34
    vAcc = 36; vQ = 40; vS = 56; vP = 68; vKf = 84; vBt = 116; vVf = 84
    a(f"""
    s_lshl_b32 {sM0}, {sW}, 13
    v_xor_b32 v3, v1, v2
    v_lshlrev_b32 v3, 4, v3
    v_lshl_add_u32 v3, v2, 8, v3
    v_add_u32 v{vKa[0]}, {sM0}, v3
    v_xor_b32 v{vKa[1]}, 64, v{vKa[0]}
    v_xor_b32 v{vKa[2]}, 0x80, v{vKa[0]}
    v_xor_b32 v{vKa[3]}, 0xc0, v{vKa[0]}
    v_lshrrev_b32 v3, 2, v2
    v_lshl_add_u32 v3, v1, 2, v3
    v_and_b32 v{vT}, 7, v3
    v_lshlrev_b32 v{vT}, 5, v{vT}
    v_lshl_add_u32 v3, v3, 8, v{vT}
    v_and_b32 v{vT}, 3, v2
    v_lshl_add_u32 v3, v{vT}, 3, v3
    v_add_u32 v{vVa[0]}, {sM0}, v3
    """)
    for t in range(1, 8): a(f"v_xor_b32 v{vVa[t]}, {32*t}, v{vVa[0]}")
    a(f"v_lshrrev_b32 v3, 1, v2")
    for t in range(8):
        a(f"v_cmp_eq_u32 vcc, {t}, v3\ns_nop 1\nv_cndmask_b32 v{vMask[t]}, 0, -1, vcc")
    a(f"""
    v_mov_b32 v{vM}, 0xff800000
    v_mov_b32 v{vLs}, 0
    v_mov_b32 v{vAcc}, 0
    v_mov_b32 v{vAcc+1}, 0
    v_mov_b32 v{vAcc+2}, 0
    v_mov_b32 v{vAcc+3}, 0
    s_mov_b32 {sC}, {f2u((1.0 if RB else 128**-0.5) * 1.4426950408889634):#x}
    s_mov_b32 {sU}, 0
    s_lshl_b32 {sNEED}, {sW}, 1
    s_add_u32 {sNEED}, {sNEED}, 2
    v_and_b32 v3, 1, v2
    v_lshlrev_b32 v3, 8, v3
    v_lshl_add_u32 v3, v1, 4, v3
    v_add_u32 v35, {QLDS}, v3
    s_lshl_b32 {sT}, {sW}, 9
    s_add_u32 {sT}, {sT}, {MLA}
    v_lshl_add_u32 v77, v0, 3, {sT}
    s_lshl_b32 {sT}, {sW}, 10
    s_add_u32 {sT}, {sT}, {COMB}
    v_lshl_add_u32 v78, v0, 4, {sT}
    s_lshl_b32 {sT}, {sW}, 2
    s_add_u32 {sT}, {sT}, {FLG+16}
    v_mov_b32 v79, {sT}
    s_cmp_eq_u32 {sW}, 0
    s_cselect_b32 {sN}, 0, 2
    """)
    if QD:
        a("s_cbranch_scc0 L_sp_q")
        gather(116, 84)
    a.lab("L_sp_q")
    a(f"""
    s_sleep 1
    ds_read_b32 v6, v{vFL} offset:4
    s_waitcnt lgkmcnt(0)
    v_readfirstlane_b32 {sT}, v6
    s_nop 0
    s_and_b32 {sT2}, {sT}, {sN}
    s_cbranch_scc0 L_sp_q2
    s_mov_b32 {sN}, 0
    """)
    q_remote()
    a.lab("L_sp_q2")
    a(f"s_bitcmp1_b32 {sT}, 0\ns_cbranch_scc0 L_sp_q")
    stamp(1)
    if PR: a(f"s_setprio {PR}")
    for s_ in range(4): a(f"ds_read_b128 v[{vQ+4*s_}:{vQ+4*s_+3}], v35 offset:{64*s_}")
    spin("L_consume", 0, sNEED, 0)
    a(f"s_mov_b32 {sN}, {sT}")
    order = [(kt, s_) for s_ in range(4) for kt in range(2)]
    for i, (kt, s_) in enumerate(order): a(f"ds_read_b128 v[{vKf+4*i}:{vKf+4*i+3}], v{vKa[s_]} offset:{kt*4096}")
    for i, (kt, s_) in enumerate(order):
        a(f"s_waitcnt lgkmcnt({7-i})")
        c = "0" if s_ == 0 else f"v[{vS+4*kt}:{vS+4*kt+3}]"
        a(f"v_mfma_f32_16x16x32_bf16 v[{vS+4*kt}:{vS+4*kt+3}], v[{vKf+4*i}:{vKf+4*i+3}], v[{vQ+4*s_}:{vQ+4*s_+3}], {c}")
    if HP: a(f"s_lshl_b32 {sT}, {sU}, 1\ns_add_u32 {sT}, {sT}, 1\nv_mov_b32 v{vT}, {sT}\nds_write_b32 v79, v{vT}")
    for s_ in range(4): a(f"v_xor_b32 v{vKa[s_]}, 0x10000, v{vKa[s_]}")
    a(f"""
    s_add_u32 {sU}, {sU}, 1
    s_add_u32 {sNEED}, {sNEED}, 8
    s_nop 1
    """)
    if RB:
        a.c("scores as the reference holds them: q.k rounded to bf16, times 128^-0.5, rounded to bf16 again")
        for rep in range(2):
            for i in range(4): a(f"v_cvt_pk_bf16_f32 v{vP+i}, v{vS+2*i}, v{vS+2*i+1}")
            for i in range(4): a(f"v_lshlrev_b32 v{vS+2*i}, 16, v{vP+i}\nv_and_b32 v{vS+2*i+1}, 0xffff0000, v{vP+i}")
            if rep == 0:
                for i in range(8): a(f"v_mul_f32 v{vS+i}, {f2u(128**-0.5):#x}, v{vS+i}")
    a(f"""
    v_max3_f32 v{vT}, v{vS}, v{vS+1}, v{vS+2}
    v_max3_f32 v{vU}, v{vS+4}, v{vS+5}, v{vS+6}
    v_max3_f32 v{vT}, v{vT}, v{vS+3}, v{vS+7}
    v_max_f32 v{vT}, v{vT}, v{vU}
    v_mov_b32 v{vU}, v{vT}
    s_nop 1
    v_permlane32_swap_b32 v{vT}, v{vU}
    v_max_f32 v{vT}, v{vT}, v{vU}
    v_mov_b32 v{vU}, v{vT}
    s_nop 1
    v_permlane16_swap_b32 v{vT}, v{vU}
    v_max_f32 v{vT}, v{vT}, v{vU}
    v_mul_f32 v{vT}, {sC}, v{vT}
    v_max_f32 v{vT}, v{vT}, v{vM}
    v_sub_f32 v{vA}, v{vM}, v{vT}
    v_exp_f32 v{vA}, v{vA}
    v_mov_b32 v{vM}, v{vT}
    """)
    for i in range(8): a(f"v_fma_f32 v{vS+i}, v{vS+i}, {sC}, -v{vT}")
    for i in range(8): a(f"v_exp_f32 v{vS+i}, v{vS+i}")
    for r in range(4): a(f"v_mul_f32 v{vAcc+r}, v{vA}, v{vAcc+r}")
    for i in range(4): a(f"v_cvt_pk_bf16_f32 v{vP+i}, v{vS+2*i}, v{vS+2*i+1}")
    a(f"""
    v_add_f32 v{vS}, v{vS}, v{vS+1}
    v_add_f32 v{vS+2}, v{vS+2}, v{vS+3}
    v_add_f32 v{vS+4}, v{vS+4}, v{vS+5}
    v_add_f32 v{vS+6}, v{vS+6}, v{vS+7}
    v_add_f32 v{vS}, v{vS}, v{vS+2}
    v_add_f32 v{vS+4}, v{vS+4}, v{vS+6}
    v_add_f32 v{vS}, v{vS}, v{vS+4}
    v_fma_f32 v{vLs}, v{vLs}, v{vA}, v{vS}
    """)
    for t in range(8):
        for i in range(4): a(f"v_and_b32 v{vBt+4*t+i}, v{vP+i}, v{vMask[t]}")
    a(f"""
    s_cmp_eq_u32 {sU}, 8
    s_cbranch_scc0 L_notlast
    v_mov_b32 v{vU}, v{vLs}
    s_nop 1
    v_permlane32_swap_b32 v{vLs}, v{vU}
    v_add_f32 v{vLs}, v{vLs}, v{vU}
    v_mov_b32 v{vU}, v{vLs}
    s_nop 1
    v_permlane16_swap_b32 v{vLs}, v{vU}
    v_add_f32 v{vLs}, v{vLs}, v{vU}
    ds_write_b64 v77, v[{vM}:{vM+1}]
    v_mov_b32 v{vU}, 1
    s_mov_b64 exec, 1
    ds_add_u32 v{vFL}, v{vU} offset:8
    s_mov_b64 exec, -1
    v_mov_b32 v{vU}, 0x100
    """)
    a.lab("L_notlast")
    a(f"s_cmp_lt_u32 {sN}, {sNEED}\ns_cbranch_scc0 L_pv")
    spin("L_sp_v", 0, sNEED, 0)
    a.lab("L_pv")
    stamp(2)
    for t in range(8):
        a(f"ds_read_b64_tr_b16 v[{vVf+4*t}:{vVf+4*t+1}], v{vVa[t]} offset:32768")
        a(f"ds_read_b64_tr_b16 v[{vVf+4*t+2}:{vVf+4*t+3}], v{vVa[t]} offset:36864")
    for t in range(8):
        a(f"s_waitcnt lgkmcnt({14-2*t})")
        a(f"v_mfma_f32_16x16x32_bf16 v[{vAcc}:{vAcc+3}], v[{vVf+4*t}:{vVf+4*t+3}], v[{vBt+4*t}:{vBt+4*t+3}], v[{vAcc}:{vAcc+3}]")
    a(f"s_cmp_eq_u32 {sU}, 8\ns_cbranch_scc1 L_cdone\nv_lshlrev_b32 v{vT}, {1 if HP else 0}, {sU}\nds_write_b32 v79, v{vT}")
    for t in range(8): a(f"v_xor_b32 v{vVa[t]}, 0x10000, v{vVa[t]}")
    a(f"s_add_u32 {sNEED}, {sNEED}, 8\ns_branch L_consume")
    a.lab("L_cdone")
    a(f"""
    s_nop 5
    ds_write_b128 v78, v[{vAcc}:{vAcc+3}]
    s_mov_b64 exec, 1
    ds_add_u32 v{vFL}, v{vU} offset:8
    s_mov_b64 exec, -1
    """)
    stamp(3)
    a.lab("L_outproj")
    a.c("out projection: 128 rows (one q head) x 144 columns, one 16-column tile per wave")
    if DP: a(finset)
    a(f"""
    v_lshrrev_b32 v3, 2, v2
    v_lshl_add_u32 v3, v1, 2, v3
    v_mul_u32_u24 v3, 288, v3
    v_and_b32 v4, 3, v2
    v_lshl_add_u32 v3, v4, 3, v3
    s_cmp_gt_u32 {sW}, 5
    s_subb_u32 {sU}, {sW}, 0
    s_lshl_b32 {sT}, {sU}, 5
    v_add_u32 v3, {sT}, v3
    v_and_b32 v5, 1, v2
    v_lshlrev_b32 v7, 8, v5
    v_lshl_add_u32 v7, v1, 3, v7
    v_add_u32 v7, {OLDS}, v7
    v_lshlrev_b32 v5, 6, v5
    v_lshl_add_u32 v5, v1, 4, v5
    s_lshl_b32 {sT}, {sP}, 2
    s_add_u32 {sT}, {sT}, {sS}
    s_lshl_b32 {sT}, {sT}, 5
    s_lshl_b32 {sT2}, {sKVH}, 1
    s_add_u32 {sT2}, {sT2}, {sB}
    s_add_u32 {sT}, {sT}, {sT2}
    s_mul_i32 {sM0}, {sT}, 1152
    s_add_u32 {sM0}, {sM0}, {PREC}
    s_lshl_b32 {sT}, {sU}, 7
    s_add_u32 {sM0}, {sM0}, {sT}
    """)
    if PR: a("s_setprio 0")
    spin("L_sp_wo", 8, 3, SPS, field=16)
    if stamps and not UD: a(f"s_memrealtime {ST(4)}")
    two = NWAVE == 8
    for half, (base, off) in enumerate(((24, 0), (44, 2*32))[:2 if two else 1]):
        if half == 1: a(f"s_cmp_gt_u32 {sW}, 5\ns_cbranch_scc0 L_op_one")
        for ks in range(4):
            a(f"ds_read_b64_tr_b16 v[{base+4*ks}:{base+1+4*ks}], v3 offset:{9216*ks+off}")
            a(f"ds_read_b64_tr_b16 v[{base+2+4*ks}:{base+3+4*ks}], v3 offset:{9216*ks+4608+off}")
    if two: a.lab("L_op_one")
    a("s_waitcnt lgkmcnt(0)\ns_barrier")
    for ks in range(4): a(f"ds_read2_b64 v[{8+4*ks}:{11+4*ks}], v7 offset0:{8*ks} offset1:{8*ks+4}")
    for ks in range(4):
        a(f"s_waitcnt lgkmcnt({3-ks})")
        c = "0" if ks == 0 else "v[40:43]"
        a(f"v_mfma_f32_16x16x32_bf16 v[40:43], v[{24+4*ks}:{27+4*ks}], v[{8+4*ks}:{11+4*ks}], {c}")
    if two:
        a("s_cbranch_scc0 L_op_st")
        for ks in range(4):
            c = "0" if ks == 0 else "v[60:63]"
            a(f"v_mfma_f32_16x16x32_bf16 v[60:63], v[{44+4*ks}:{47+4*ks}], v[{8+4*ks}:{11+4*ks}], {c}")
        a.lab("L_op_st")
    a("s_mov_b32 exec_lo, 0x00030003\ns_mov_b32 exec_hi, 0x00030003\ns_nop 5")
    for r in range(4): a(f"v_bfi_b32 v{40+r}, {sFF}, v{tv(r, vTg)}, v{40+r}")
    a(f"buffer_store_dwordx4 v[40:43], v5, {WS_}, {sM0} offen sc1")
    if HA: a(f"s_cmp_eq_u32 {sW}, {HA - 1}\ns_cbranch_scc0 L_fin\nv_mov_b32 v4, 0x2000000\ns_mov_b64 exec, 1\n{'s_waitcnt vmcnt(0)' if HACK else 's_nop 0'}\nds_add_u32 v{vFL}, v4 offset:8")
    if DP: a(f"s_mov_b64 exec, -1\ns_cmp_gt_u32 {sW}, {9 - DP}\ns_cbranch_scc1 L_hop2")
    if two:
        a("s_cbranch_scc0 L_fin")
        for r in range(4): a(f"v_bfi_b32 v{60+r}, {sFF}, v{tv(r, vTg)}, v{60+r}")
        a(f"buffer_store_dwordx4 v[60:63], v5, {WS_}, {sM0} offen offset:256 sc1")
    a.mark("WARM_OFF")
    a.lab("L_fin")
    if amp:
        i0, i1, K = amp
        lo = lambda i: f"s{88+2*i}" if i < 7 else "s86"
        a(f"""
        s_cmp_eq_u32 s2, {ampid}
        s_cbranch_scc0 L_end
        s_cmp_eq_u32 {sW}, 5
        s_cbranch_scc0 L_end
        s_memrealtime s[86:87]
        s_waitcnt lgkmcnt(0)
        s_sub_u32 {sT}, {lo(i1)}, {lo(i0)}
        s_mul_i32 {sT}, {sT}, {K}
        s_min_u32 {sT}, {sT}, 100000
        """)
        a.lab("L_amp")
        a(f"s_memrealtime s[84:85]\ns_waitcnt lgkmcnt(0)\ns_sub_u32 {sT2}, s84, s86\ns_cmp_lt_u32 {sT2}, {sT}\ns_cbranch_scc1 L_amp")
    if stamps:
        a(f"""
        s_memrealtime s[86:87]
        s_cmp_gt_u32 {sW}, 7
        s_cbranch_scc1 L_end
        s_waitcnt lgkmcnt(0)
        s_mov_b64 exec, 1
        s_lshl_b32 {sT}, s2, 9
        s_lshl_b32 {sT2}, {sW}, 6
        s_add_u32 {sT}, {sT}, {sT2}
        s_add_u32 {sT}, {sT}, {STAMP}
        s_add_u32 s28, s28, {sT}
        s_addc_u32 s29, s29, 0
        v_mov_b32 v3, 0
        """)
        for i in range(7):
            a(f"v_mov_b32 v84, s{88+2*i}\nv_mov_b32 v85, s{89+2*i}\nglobal_store_dwordx2 v3, v[84:85], s[28:29] offset:{8*i}\ns_nop 1")
        a(f"v_mov_b32 v84, s86\nv_mov_b32 v85, s87\nglobal_store_dwordx2 v3, v[84:85], s[28:29] offset:56")
    a.lab("L_end")
    a("s_endpgm")
    a.lab("L_fb")
    a.c("the group is not (or not yet) seen complete on this die: publish and poll the memory-side copies as well")
    a(f"v_mov_b32 v7, 2\nds_write_b32 v{vFL}, v7 offset:4\nv_mov_b32 v7, 3\ns_mov_b32 {sTOG}, {DELTA}\ns_xor_b32 {sTTG}, {sTAG}, {sT4}\ns_waitcnt vmcnt(0)")
    q_remote()
    a("s_branch L_pq_k")

    a.lab("L_hi")
    a(f"s_cmp_eq_u32 {sW}, 4\ns_cbranch_scc0 L_567")
    a.c("wave 4: streams 8 groups of (32 KB K, 32 KB V) into a two-group LDS ring, swizzled for conflict-free reads")
    vKo = [4, 5, 6, 7]; vVo = [8, 9]
    a(f"""
    s_setprio {3 if PR else 1}
    v_lshrrev_b32 v1, 4, v0
    v_and_b32 v2, 15, v0
    v_xor_b32 v3, v2, v1
    v_lshlrev_b32 v3, 4, v3
    v_lshl_add_u32 v{vKo[0]}, v1, 8, v3
    v_xor_b32 v{vKo[1]}, 64, v{vKo[0]}
    v_xor_b32 v{vKo[2]}, 0x80, v{vKo[0]}
    v_xor_b32 v{vKo[3]}, 0xc0, v{vKo[0]}
    v_lshlrev_b32 v3, 1, v1
    v_xor_b32 v3, v2, v3
    v_lshlrev_b32 v3, 4, v3
    v_lshl_add_u32 v{vVo[0]}, v1, 8, v3
    v_xor_b32 v{vVo[1]}, 0x80, v{vVo[0]}
    s_lshl_b32 {sT}, {sB}, 4
    s_add_u32 {sT}, {sT}, {sKVH}
    s_lshl_b32 {sT}, {sT}, 2
    s_add_u32 {sT}, {sT}, {sS if LAY != 2 else 0}
    s_lshl_b32 {sT}, {sT}, 18
    s_mov_b32 s42, {0x40000 if LAY != 2 else 0x100000}
    s_mov_b32 s43, 0x20000
    s_mov_b32 s46, {0x40000 if LAY != 2 else 0x100000}
    s_mov_b32 s47, 0x20000
    s_cmp_eq_u32 {sP}, 0
    s_waitcnt lgkmcnt(0)
    s_cselect_b64 s[40:41], s[6:7], s[16:17]
    s_cselect_b64 s[44:45], s[8:9], s[18:19]
    s_add_u32 s40, s40, {sT}
    s_addc_u32 s41, s41, 0
    s_add_u32 s44, s44, {sT}
    s_addc_u32 s45, s45, 0
    """)
    a(eload)
    a(f"""
    s_mul_i32 {sKO}, {sS}, {(PH * 32768, PH * 16384, 32768 + PH * 131072, 0, 0)[LAY]}
    s_mov_b32 {sM0}, 0
    s_mov_b32 {sU}, 0
    v_mov_b32 v{vFL}, {FLG}
    v_mov_b32 v10, {-NT}
    v_mov_b32 v11, 0
    v_mov_b32 v16, 0
    """)
    a(f"s_lshl_b32 s72, {sJ}, 12")
    a("s_waitcnt lgkmcnt(0)\ns_barrier")
    stamp(1)
    a.lab("L_load")
    a(f"s_sub_u32 {sT}, {sU}, {FU}\ns_cmp_lt_u32 {sT}, {LU - FU}\ns_cselect_b64 vcc, -1, 0\ns_cselect_b32 s83, {NT - NTM}, 0")
    a(f"s_mov_b32 s73, {sM0}")
    for t in range(2):
        a(f"s_add_u32 s74, s73, 32768")
        a.lab(f"L_tile{t}")
        a(f"""
        s_mov_b32 m0, s73
        s_add_u32 {sT2}, {sKO}, s72
        s_add_u32 s72, s72, 4096
        s_and_b32 s72, s72, 0x7fff
        s_add_u32 s73, s73, 4096
        s_waitcnt lgkmcnt(0)
        v_readfirstlane_b32 s84, v16
        ds_read_b32 v16, v{vFL} offset:12
        """)
        for k in range(4):
            nb = 4*t + k
            a(f"s_cbranch_vccz L_nl{nb}\ns_waitcnt vmcnt({NHI})")
            if k in (0, 2): a(f"s_cmp_eq_u32 s84, 1\ns_cbranch_scc1 L_nl{nb}\ns_waitcnt vmcnt({NW-1})")
            a.lab(f"L_nl{nb}")
            a(f"s_waitcnt vmcnt({NWL})")
            if k == 0: a(f"v_add_u32 v12, s83, v10\nv_max_i32 v11, v11, v12\nds_write_b32 v{vFL}, v11\nv_add_u32 v10, 1, v10")
            vo = vKo[k] if t == 0 else vVo[k & 1]
            a(f"buffer_load_dwordx4 v{vo}, {K_ if t == 0 else V_}, {sT2} offen offset:{k*1024} {fl} lds")
        a(f"s_cmp_lt_u32 s73, s74\ns_cbranch_scc1 L_tile{t}")
    a(f"""
    s_add_u32 {sKO}, {sKO}, {(32768, 16384, 131072, 4096, 8192)[LAY]}
    s_and_b32 {sKO}, {sKO}, {(0x3ffff, 0x1ffff, 0xfffff, 0x7fff, 0x27fff)[LAY]}
    """)
    if LAY == 4: a(f"s_cmp_eq_u32 {sU}, 3\ns_cselect_b32 {sT}, 0x20000, 0\ns_or_b32 {sKO}, {sKO}, {sT}")
    a(f"""
    s_xor_b32 {sM0}, {sM0}, 0x10000
    s_add_u32 {sU}, {sU}, 1
    """)
    if UD:
        for k, u in zip((4, 5, 6), UD):
            a(f"s_cmp_eq_u32 {sU}, {u}\ns_cbranch_scc0 L_du{u}\ns_memrealtime {ST(k)}")
            a.lab(f"L_du{u}")
    a(f"""
    s_cmp_lt_u32 {sU}, 2
    s_cbranch_scc1 L_load
    s_cmp_eq_u32 {sU}, 8
    s_cbranch_scc1 L_ldone
    """)
    if HP: a(f"s_lshl_b32 {sNEED}, {sU}, 1\ns_sub_u32 {sNEED}, {sNEED}, 3")
    else: a(f"s_sub_u32 {sNEED}, {sU}, 1")
    minprog("L_free", sNEED, 12)
    a("s_branch L_load")
    a.lab("L_ldone")
    stamp(2)
    for j in range(NT, -1, -1):
        a(f"v_mov_b32 v11, {128-j}\ns_waitcnt vmcnt({4*j})\nds_write_b32 v{vFL}, v11")
    stamp(3)
    a("s_setprio 0")
    a(common); a(tagset)
    a("s_branch L_outproj")
    a.lab("L_567")
    a(f"""
    v_mov_b32 v4, 0
    v_lshlrev_b32 v3, 2, v0
    v_add_u32 v3, {FLG}, v3
    s_mov_b64 exec, 0xffff
    ds_write_b32 v3, v4
    s_mov_b64 exec, -1
    s_waitcnt lgkmcnt(0)
    """)
    a(eload); a(common)
    a("s_waitcnt lgkmcnt(0)\ns_barrier")
    a(tagset)
    if NWAVE > 8 and not W79:
        a(f"s_cmp_gt_u32 {sW}, 7\ns_cbranch_scc0 L_57")
        if TLB:
            a(f"""
            s_mul_i32 {sT}, {sP}, 40
            s_sub_u32 {sT2}, {sW}, 7
            s_lshl_b32 {sT2}, {sT2}, 3
            s_add_u32 {sT}, {sT}, {sT2}
            s_load_dwordx2 s[40:41], s[0:1], {sT}
            s_lshl_b32 {sT}, {sB}, 4
            s_add_u32 {sT}, {sT}, {sKVH}
            s_lshl_b32 {sT}, {sT}, 2
            s_add_u32 {sT}, {sT}, {sS}
            s_lshl_b32 {sT}, {sT}, 18
            s_waitcnt lgkmcnt(0)
            s_add_u32 s40, s40, {sT}
            s_addc_u32 s41, s41, 0
            s_mul_i32 {sKO}, {sS}, {PH * 32768}
            s_mov_b32 {sU}, {262144 // TLB}
            """)
            a.lab("L_tlb")
            a(f"""
            s_load_dword s42, s[40:41], {sKO}
            s_add_u32 {sKO}, {sKO}, {TLB}
            s_and_b32 {sKO}, {sKO}, 0x3ffff
            s_waitcnt lgkmcnt(0)
            s_sub_u32 {sU}, {sU}, 1
            s_cmp_lg_u32 {sU}, 0
            s_cbranch_scc1 L_tlb
            """)
        if NHI:
            a.c("wave 8: compares this workgroup's stream position with its group's; the loader keeps more loads in flight while it is behind")
            a(f"""
            s_cmp_eq_u32 {sW}, 8
            s_cbranch_scc0 L_sp_x
            s_lshl_b32 {sPO}, {sG}, 7
            s_add_u32 {sPO}, {sPO}, {PROG}
            s_lshl_b32 {sKO}, {sJ}, 2
            s_add_u32 {sKO}, {sKO}, {sPO}
            s_mov_b32 {sC}, s85
            v_lshlrev_b32 v8, 2, v0
            v_mov_b32 v9, 0
            """)
            spin("L_sp_ct", 0, CST, 8)
            a.lab("L_ctl")
            a(f"""
            ds_read_b32 v6, v{vFL}
            s_waitcnt lgkmcnt(0)
            v_readfirstlane_b32 {sU}, v6
            v_or_b32 v7, {sC}, v6
            s_mov_b64 exec, 1
            buffer_store_dword v7, v9, {WS_}, {sKO} offen
            s_mov_b64 exec, 0xff
            s_sleep {SC}
            buffer_load_dword v10, v8, {WS_}, {sPO} offen sc1
            s_waitcnt vmcnt(0)
            v_subrev_u32 v10, {sC}, v10
            v_cmp_lt_u32 vcc, 0xff, v10
            s_cbranch_vccnz L_ctl_n
            v_readlane_b32 s72, v10, {sJ}
            v_readlane_b32 s73, v10, 0
            v_readlane_b32 s74, v10, 1
            v_readlane_b32 s75, v10, 2
            v_readlane_b32 s76, v10, 3
            v_readlane_b32 s80, v10, 4
            v_readlane_b32 s81, v10, 5
            v_readlane_b32 s82, v10, 6
            v_readlane_b32 s83, v10, 7
            s_add_u32 s73, s73, s74
            s_add_u32 s75, s75, s76
            s_add_u32 s80, s80, s81
            s_add_u32 s82, s82, s83
            s_add_u32 s73, s73, s75
            s_add_u32 s80, s80, s82
            s_add_u32 s73, s73, s80
            s_lshl_b32 s72, s72, 3
            s_add_u32 s72, s72, {TH}
            s_cmp_lt_u32 s72, s73
            s_cselect_b32 s73, 1, 0
            v_mov_b32 v11, s73
            ds_write_b32 v{vFL}, v11 offset:12
            """)
            a.lab("L_ctl_n")
            a(f"s_mov_b64 exec, -1\ns_cmp_lt_u32 {sU}, {CEND}\ns_cbranch_scc1 L_ctl")
        spin("L_sp_x", 0, 128 - NT, 8)
        a("s_branch L_outproj")
        a.lab("L_57")
    vWo = 84
    if WARM: a(f"s_cmp_eq_u32 {sW}, 7\ns_cbranch_scc0 L_warmed\ns_mov_b64 exec, 0\ns_branch L_w0")
    a.lab("L_warmed")
    if W79: a(f"s_cmp_eq_u32 {sW}, 6\ns_cbranch_scc1 L_comb\ns_cmp_eq_u32 {sW}, 5\ns_cbranch_scc1 L_hop1")
    a.c("waves 7-9: twelve 1 KB pieces each of the 128 x 288 B slice of wo, requested right behind the last V tile")
    a(f"""
    s_mul_i32 {sT}, {sP}, 40
    s_add_u32 {sT}, {sT}, 32
    s_load_dwordx2 s[60:61], s[0:1], {sT}
    s_sub_u32 {sN}, {sW}, {7 if W79 else 5}
    s_mul_i32 {sN}, {sN}, 768
    v_add_u32 v5, {sN}, v0
    s_mul_i32 {sN}, {sN}, 16
    s_mov_b32 {sT}, 3641
    s_movk_i32 {sT2}, 864
    """)
    for i in range(12):
        a(f"""
        v_add_u32 v3, {64*i}, v5
        v_mul_lo_u32 v4, v3, {sT}
        v_lshrrev_b32 v4, 16, v4
        v_mul_lo_u32 v4, v4, {sT2}
        v_lshl_add_u32 v{vWo+i}, v3, 4, v4
        """)
    a(f"""
    s_lshl_b32 {sT}, {sKVH}, 1
    s_add_u32 {sT}, {sT}, {sB}
    s_mul_i32 {sT}, {sT}, {128*1152}
    s_mul_i32 {sT2}, {sS}, 288
    s_add_u32 {sT}, {sT}, {sT2}
    s_waitcnt lgkmcnt(0)
    s_add_u32 s60, s60, {sT}
    s_addc_u32 s61, s61, 0
    s_mov_b32 s62, {127*1152+288}
    s_mov_b32 s63, 0x20000
    """)
    if not W79: a(f"s_cmp_eq_u32 {sW}, 6\ns_cbranch_scc1 L_comb\ns_cmp_eq_u32 {sW}, 5\ns_cbranch_scc1 L_hop1")
    def wo_issue(tag):
        spin(f"L_sp_a{tag}", 0, 128 - NT - 8, 8)
        spin(f"L_sp_b{tag}", 0, 128 - WOGO, 0)
        minprog(f"L_sp_c{tag}", 14 if HP else 7, 100)
        stamp(1)
        for i in range(12): a(f"s_add_u32 m0, {sN}, {i*1024}\ns_nop 0\nbuffer_load_dwordx4 v{vWo+i}, {WO_}, 0 offen {fl} lds")
        stamp(2)
    def wo_done(n):
        a(f"v_mov_b32 v4, 0x10000\ns_waitcnt vmcnt({n})\ns_mov_b64 exec, 1\nds_add_u32 v{vFL}, v4 offset:8\ns_mov_b64 exec, -1")
    if W79:
        if NHI:
            a.c("wave 8: compares this workgroup's stream position with its group's; the loader keeps more loads in flight while it is behind")
            a(f"""
            s_cmp_eq_u32 {sW}, 8
            s_cbranch_scc0 L_57
            s_lshl_b32 {sPO}, {sG}, 7
            s_add_u32 {sPO}, {sPO}, {PROG}
            s_lshl_b32 {sKO}, {sJ}, 2
            s_add_u32 {sKO}, {sKO}, {sPO}
            s_mov_b32 {sC}, s85
            v_lshlrev_b32 v8, 2, v0
            v_mov_b32 v9, 0
            """)
            spin("L_sp_ct", 0, CST, 8)
            a.lab("L_ctl")
            a(f"""
            ds_read_b32 v6, v{vFL}
            s_waitcnt lgkmcnt(0)
            v_readfirstlane_b32 {sU}, v6
            v_or_b32 v7, {sC}, v6
            s_mov_b64 exec, 1
            buffer_store_dword v7, v9, {WS_}, {sKO} offen
            s_mov_b64 exec, 0xff
            s_sleep {SC}
            buffer_load_dword v10, v8, {WS_}, {sPO} offen sc1
            s_waitcnt vmcnt(0)
            v_subrev_u32 v10, {sC}, v10
            v_cmp_lt_u32 vcc, 0xff, v10
            s_cbranch_vccnz L_ctl_n
            v_readlane_b32 s72, v10, {sJ}
            v_readlane_b32 s73, v10, 0
            v_readlane_b32 s74, v10, 1
            v_readlane_b32 s75, v10, 2
            v_readlane_b32 s76, v10, 3
            v_readlane_b32 s80, v10, 4
            v_readlane_b32 s81, v10, 5
            v_readlane_b32 s82, v10, 6
            v_readlane_b32 s83, v10, 7
            s_add_u32 s73, s73, s74
            s_add_u32 s75, s75, s76
            s_add_u32 s80, s80, s81
            s_add_u32 s82, s82, s83
            s_add_u32 s73, s73, s75
            s_add_u32 s80, s80, s82
            s_add_u32 s73, s73, s80
            s_lshl_b32 s72, s72, 3
            s_add_u32 s72, s72, {TH}
            s_cmp_lt_u32 s72, s73
            s_cselect_b32 s73, 1, 0
            v_mov_b32 v11, s73
            ds_write_b32 v{vFL}, v11 offset:12
            """)
            a.lab("L_ctl_n")
            a(f"s_mov_b64 exec, -1\ns_cmp_lt_u32 {sU}, {CEND}\ns_cbranch_scc1 L_ctl")
        a.lab("L_57")
    if PB:
        a(f"""
        s_cmp_eq_u32 {sW}, 9
        s_cbranch_scc0 L_pb_d
        s_cmp_le_u32 {sJ}, {PBA}
        s_cbranch_scc0 L_pb_d
        s_lshl_b32 {sKO}, s2, 7
        s_add_u32 {sKO}, {sKO}, 0x40000
        s_andn2_b32 {sM0}, s2, 7
        s_lshl_b32 {sM0}, {sM0}, 7
        s_add_u32 {sM0}, {sM0}, 0x40000
        v_lshlrev_b32 v12, 7, v0
        v_lshlrev_b32 v13, 2, v0
        v_lshlrev_b32 v14, 4, v0
        v_mov_b32 v9, 0
        """)
        spin("L_sp_pb", 0, 24, 8)
        a.lab("L_pb")
        a(f"s_sleep {SC2}\nds_read_b32 v6, v{vFL}\ns_waitcnt lgkmcnt(0)\nv_readfirstlane_b32 {sU}, v6")
        if PB & 1: a(f"s_mov_b64 exec, 1\nbuffer_store_dword v6, v9, {WS_}, {sKO} offen sc1\ns_mov_b64 exec, -1")
        if PB & 8: a(f"s_mov_b64 exec, 0xffffffff\nbuffer_store_dword v6, v13, {WS_}, {sKO} offen sc1\ns_mov_b64 exec, -1")
        if PB & 16: a(f"s_mov_b64 exec, 0xff\nbuffer_store_dwordx4 v[8:11], v14, {WS_}, {sKO} offen sc1\ns_mov_b64 exec, -1")
        if PB & 2: a(f"s_mov_b64 exec, 0xff\nbuffer_load_dword v10, v12, {WS_}, {sM0} offen sc1\ns_mov_b64 exec, -1")
        if PB & 4:
            for i in range(8): a(f"s_add_u32 {sT}, {sM0}, {128*i}\ns_load_dword s{72+i if i < 5 else 75+i}, s[28:29], {sT} glc")
        a(f"s_waitcnt vmcnt(0) lgkmcnt(0)\ns_cmp_lt_u32 {sU}, 96\ns_cbranch_scc1 L_pb")
        a.lab("L_pb_d")
    wo_issue(7); wo_done(0)
    a("s_branch L_outproj")
    a.lab("L_comb")
    a.c("wave 6: merge the four consumers (online-softmax states), publish o / l and log2-sum-exp")
    a(f"""
    v_lshlrev_b32 v8, 4, v0
    v_add_u32 v8, {COMB}, v8
    v_lshlrev_b32 v9, 3, v0
    v_add_u32 v9, {MLA}, v9
    v_and_b32 v10, 1, v2
    v_lshlrev_b32 v10, 9, v10
    v_lshrrev_b32 v11, 1, v2
    v_lshl_add_u32 v10, v11, 6, v10
    v_lshl_add_u32 v10, v1, 4, v10
    v_lshlrev_b32 v11, 4, v0
    v_add_u32 v11, 1024, v11
    s_lshl_b32 {sT}, {sG}, 3
    s_add_u32 {sT}, {sT}, {sJ}
    s_mul_i32 {sM0}, {sT}, 1152
    s_add_u32 {sM0}, {sM0}, {OREC}
    s_add_u32 {sKO}, {sM0}, {DELTA}
    v_mov_b32 v82, {sTL}
    """)
    if PR: a(f"s_setprio {PR}")
    spin("L_sp_m6", 4, 1, 8)
    a(f"s_and_b32 {sLAST}, {sT}, 2")
    if W79: spin("L_sp_a6", 0, 128 - NT - 8, 8)
    else: wo_issue(6)
    a.mark("WARM_ON")
    spin("L_sp_ml", 8, 4, 0, field=0)
    vA4 = 16; vML = 32
    for w in range(4): a(f"ds_read_b64 v[{vML+2*w}:{vML+2*w+1}], v9 offset:{512*w}")
    a(f"s_waitcnt lgkmcnt(0)\nv_max3_f32 v40, v{vML}, v{vML+2}, v{vML+4}\nv_max_f32 v40, v40, v{vML+6}")
    for w in range(4): a(f"v_sub_f32 v{vML+2*w}, v{vML+2*w}, v40")
    for w in range(4): a(f"v_exp_f32 v{vML+2*w}, v{vML+2*w}")
    a(f"""
    s_nop 0
    v_mul_f32 v41, v{vML}, v{vML+1}
    v_fmac_f32 v41, v{vML+2}, v{vML+3}
    v_fmac_f32 v41, v{vML+4}, v{vML+5}
    v_fmac_f32 v41, v{vML+6}, v{vML+7}
    v_rcp_f32 v42, v41
    v_log_f32 v43, v41
    s_nop 0
    v_add_f32 v43, v43, v40
    v_bfi_b32 v48, {sFF}, v82, v43
    v_bfi_b32 v52, {sFF}, v{vTg}, v43
    v_bfi_b32 v49, {sFF}, v{vTK[1]}, v43
    v_bfi_b32 v50, {sFF}, v{vTK[2]}, v43
    v_bfi_b32 v51, {sFF}, v{vTK[3]}, v43
    s_mov_b64 exec, 3
    buffer_store_dwordx4 v[48:51], v11, {WS_}, {sKO} offen
    s_cmp_eq_u32 {sLAST}, 0
    s_cbranch_scc1 L_pub1
    v_mov_b32 v53, v49
    v_mov_b32 v54, v50
    v_mov_b32 v55, v51
    buffer_store_dwordx4 v[52:55], v11, {WS_}, {sM0} offen sc1
    """)
    a.lab("L_pub1")
    a("s_mov_b64 exec, -1")
    for w in range(4): a(f"v_mul_f32 v{vML+2*w}, v{vML+2*w}, v42")
    spin("L_sp_acc", 8, 4, 0, field=8)
    for w in range(4): a(f"ds_read_b128 v[{vA4+4*w}:{vA4+4*w+3}], v8 offset:{1024*w}")
    for w in range(4):
        a(f"s_waitcnt lgkmcnt({3-w})")
        for h in range(2):
            if w == 0: a(f"v_pk_mul_f32 v[{44+2*h}:{45+2*h}], v[{vA4+2*h}:{vA4+2*h+1}], v[{vML}:{vML+1}] op_sel_hi:[1,0]")
            else: a(f"v_pk_fma_f32 v[{44+2*h}:{45+2*h}], v[{vA4+4*w+2*h}:{vA4+4*w+2*h+1}], v[{vML+2*w}:{vML+2*w+1}], v[{44+2*h}:{45+2*h}] op_sel_hi:[1,0,1]")
    for r in range(4): a(f"v_bfi_b32 v{56+r}, {sFF}, v{tv(r, 82)}, v{44+r}")
    a(f"buffer_store_dwordx4 v[56:59], v10, {WS_}, {sKO} offen\ns_cmp_eq_u32 {sLAST}, 0\ns_cbranch_scc1 L_pub2")
    for r in range(4): a(f"v_bfi_b32 v{44+r}, {sFF}, v{tv(r, vTg)}, v{44+r}")
    a(f"buffer_store_dwordx4 v[44:47], v10, {WS_}, {sM0} offen sc1")
    a.lab("L_pub2")
    stamp(3)
    if W79 and ACK: a("s_waitcnt vmcnt(0)")
    if W79: a(f"v_mov_b32 v4, 0x1000000\ns_mov_b64 exec, 1\nds_add_u32 v{vFL}, v4 offset:8\ns_mov_b64 exec, -1")
    else: wo_done(2)
    a.mark("WARM_OFF")
    a("s_branch L_outproj")
    a.lab("L_hop1")
    a.c("wave 5: gather the group's eight records for one q head, merge the key quarters, later sum 32 tile partials")
    a(f"""
    v_lshrrev_b32 v12, 5, v0
    v_mul_u32_u24 v12, {4*1152}, v12
    v_and_b32 v6, 31, v0
    v_lshl_add_u32 v8, v6, 4, v12
    s_lshl_b32 {sT}, {sB}, 9
    v_add_u32 v8, {sT}, v8
    s_lshl_b32 {sT}, {sB}, 4
    s_add_u32 {sT}, {sT}, 1024
    v_add_u32 v12, {sT}, v12
    v_lshlrev_b32 v56, 3, v0
    v_add_u32 v56, {OLDS}, v56
    s_mul_i32 {sPO}, {sG}, {8*1152}
    s_add_u32 {sPO}, {sPO}, {OREC + DELTA}
    """)
    a(finset)
    if PR: a(f"s_setprio {PR}")
    spin("L_sp_m5", 4, 1, 8)
    a(f"""
    s_mov_b32 {sTAG}, {tagL}
    s_xor_b32 {sTTG}, {sTAG}, {sT4}
    s_bitcmp1_b32 {sT}, 1
    s_cselect_b32 {sTOG}, {DELTA}, 0
    s_cselect_b32 {sTTG}, {sTTG}, 0
    """)
    if W79:
        spin("L_sp_a5", 0, 128 - NT - 8, 8)
        a.mark("WARM_ON")
        spin("L_sp_b5", 8, 1, SP1, field=24)
        if S1: a(f"s_sleep {S1}")
    else:
        wo_issue(5)
        a.mark("WARM_ON")
        wo_done(0)
    stamp(4)
    loads = [(32 + 4*i, 12, 1152*i) for i in range(4)] + [(vD + 4*i, 8, 1152*i) for i in range(4)]
    poll("L_pl", loads if MERGE else loads[:4], alt=True)
    a(f"""
    v_max3_f32 v48, v32, v36, v40
    v_max_f32 v48, v48, v44
    v_sub_f32 v49, v32, v48
    v_sub_f32 v50, v36, v48
    v_sub_f32 v51, v40, v48
    v_sub_f32 v52, v44, v48
    v_exp_f32 v32, v49
    v_exp_f32 v34, v50
    v_exp_f32 v36, v51
    v_exp_f32 v38, v52
    v_add_f32 v48, v32, v34
    v_add_f32 v53, v36, v38
    v_add_f32 v48, v48, v53
    v_rcp_f32 v48, v48
    """)
    if not MERGE: poll("L_po", loads[4:], alt=True)
    stamp(5)
    for h in range(2): a(f"v_pk_mul_f32 v[{60+2*h}:{61+2*h}], v[{vD+2*h}:{vD+2*h+1}], v[32:33] op_sel_hi:[1,0]")
    for s_ in range(1, 4):
        for h in range(2): a(f"v_pk_fma_f32 v[{60+2*h}:{61+2*h}], v[{vD+4*s_+2*h}:{vD+4*s_+2*h+1}], v[{32+2*s_}:{33+2*s_}], v[{60+2*h}:{61+2*h}] op_sel_hi:[1,0,1]")
    for h in range(2): a(f"v_pk_mul_f32 v[{60+2*h}:{61+2*h}], v[{60+2*h}:{61+2*h}], v[48:49] op_sel_hi:[1,0]")
    a(f"""
    v_cvt_pk_bf16_f32 v60, v60, v61
    v_cvt_pk_bf16_f32 v61, v62, v63
    ds_write_b64 v56, v[60:61]
    s_waitcnt lgkmcnt(0)
    s_barrier
    """)
    a.lab("L_hop2")
    a(f"s_cmp_lt_u32 s73, 9\ns_cbranch_scc0 L_fin\ns_mov_b32 {sPO}, s72")
    if HA: spin("L_sp_h2", 8, 3, SP2, field=24)
    if HS: a(f"s_sleep {HS}")
    poll("L_pp", [(vD + 4*i, 57, 1152*i) for i in range(4)], gap=PS)
    stamp(6)
    for d in range(2): a(f"v_pk_add_f32 v[{48+2*d}:{49+2*d}], v[{16+2*d}:{17+2*d}], v[{20+2*d}:{21+2*d}]\nv_pk_add_f32 v[{52+2*d}:{53+2*d}], v[{24+2*d}:{25+2*d}], v[{28+2*d}:{29+2*d}]")
    for d in range(2): a(f"v_pk_add_f32 v[{48+2*d}:{49+2*d}], v[{48+2*d}:{49+2*d}], v[{52+2*d}:{53+2*d}]")
    a(f"""
    s_nop 1
    v_permlane32_swap_b32 v48, v50
    v_permlane32_swap_b32 v49, v51
    v_add_f32 v48, v48, v50
    v_add_f32 v49, v49, v51
    s_nop 1
    v_permlane16_swap_b32 v48, v49
    v_add_f32 v48, v48, v49
    s_nop 1
    v_add_f32_dpp v49, v48, v48 row_ror:8 row_mask:0xf bank_mask:0xf
    v_cvt_pk_bf16_f32 v49, v49, v49
    s_mov_b32 exec_lo, 0x00ff00ff
    s_mov_b32 exec_hi, 0x00ff00ff
    buffer_store_short v49, v58, {OUT_}, 0 offen
    """)
    a.mark("WARM_OFF")
    a.c("every workgroup of this problem has read the epoch by now: advance it for the next launch")
    a(f"""
    s_or_b32 {sT}, {sKVH}, {sS}
    s_xor_b32 {sT2}, {sW}, 5
    s_or_b32 {sT}, {sT}, {sT2}
    s_cmp_eq_u32 {sT}, 0
    s_cbranch_scc0 L_fin
    s_mov_b64 exec, 1
    v_mov_b32 v48, {sE}
    s_lshl_b32 {sT}, {sP}, 8
    v_mov_b32 v49, {sT}
    buffer_store_dword v48, v49, {WS_}, 0 offen
    s_branch L_fin
    """)
    head = HEADER + f"; @launch grid=(256,1,1) block=({64*NWAVE},1,1) lds={LDSSZ}\n"
    head += f'.amdgcn_target "amdgcn-amd-amdhsa--gfx950"\n.text\n.globl {NAME}\n.p2align 8\n.type {NAME},@function\n'
    tail = f""".section .rodata,"a"
.p2align 6
.amdhsa_kernel {NAME}
  .amdhsa_next_free_vgpr 152
  .amdhsa_next_free_sgpr 102
  .amdhsa_accum_offset 152
  .amdhsa_group_segment_fixed_size 0
  .amdhsa_kernarg_size 104
  .amdhsa_user_sgpr_count 2
  .amdhsa_user_sgpr_kernarg_segment_ptr 1
  .amdhsa_system_sgpr_workgroup_id_x 1
.end_amdhsa_kernel
"""
    lines = a.L
    if WARM:
        lines, n = add_pads(lines, head, "L_w0:\n" + tail, WARM)
        lines += [f"L_w{n}:", "    s_mov_b64 exec, -1", "    s_branch L_warmed"]
    else:
        lines = [l for l in lines if not l.strip().startswith(";@")]
    return head + "\n".join(lines) + "\n" + tail

if __name__ == "__main__":
    for name, kw in eval(sys.argv[1]).items():
        open(name, "w").write(gen(**kw))
        print("wrote", name)
```
